```python
import torch

def _softmax(x, axis=-1):
    return torch.softmax(x, dim=axis)
def _gelu(x):
    return torch.nn.functional.gelu(x, approximate="tanh")
def _silu(x):
    return torch.nn.functional.silu(x)
def _sigmoid(x):
    return torch.sigmoid(x)
def _layernorm(x, axis=-1, eps=1e-5):
    m = x.mean(dim=axis, keepdim=True)
    v = x.var(dim=axis, keepdim=True, unbiased=False)
    return (x - m) / torch.sqrt(v + eps)
def _scatter_add(tgt, idx, src, axis=0):
    return tgt.clone().index_add_(axis, idx, src)
def _segment_sum(src, seg, n):
    out = torch.zeros((n,) + src.shape[1:], dtype=src.dtype)
    return out.index_add_(0, seg, src)
def _pad(x, pw):
    flat = tuple(v for pair in reversed(pw) for v in pair)
    return torch.nn.functional.pad(x, flat)

kernel_name = 'interleave_layers__sliding_local_dilated__geglu_ffn__prompt'

def setup_inputs():

    _w = (lambda a: (lambda t: t.to(torch.bfloat16) if t.is_floating_point() else t)(torch.as_tensor(a)))
    def _A_setup():
        B, S, D = 1, 2048, 512
        return {
            "x": _w((lambda *s: torch.randn(*s, dtype=torch.bfloat16) * 0.05)(B, S, D)),
            "wqkv": _w((lambda *s: torch.randn(*s, dtype=torch.bfloat16) * 0.05)(D, 3 * D)),
            "wo": _w((lambda *s: torch.randn(*s, dtype=torch.bfloat16) * 0.05)(D, D)),
        }
    _A_in = _A_setup()

    def _B_setup():
        B, S, D, F = 1, 2048, 512, 1376
        return {
            "x": _w((lambda *s: torch.randn(*s, dtype=torch.bfloat16) * 0.05)(B, S, D)),
            "w_gate": _w((lambda *s: torch.randn(*s, dtype=torch.bfloat16) * 0.05)(D, F)),
            "w_up": _w((lambda *s: torch.randn(*s, dtype=torch.bfloat16) * 0.05)(D, F)),
            "w_down": _w((lambda *s: torch.randn(*s, dtype=torch.bfloat16) * 0.05)(F, D)),
        }
    _B_in = _B_setup()

    return {
        "A_x": _A_in["x"],
        "A_wqkv": _A_in["wqkv"],
        "A_wo": _A_in["wo"],
        "B_x": _B_in["x"],
        "B_w_gate": _B_in["w_gate"],
        "B_w_up": _B_in["w_up"],
        "B_w_down": _B_in["w_down"],
    }

def reference(A_x, A_wqkv, A_wo, B_x, B_w_gate, B_w_up, B_w_down):
    def _A_ref(x, wqkv, wo):
        B, S, D = x.shape
        H = 32; Dh = D // H
        W, dil = 8, 2
        qkv = (lambda x, *d: x.permute(*d))((x @ wqkv).reshape(B, S, 3, H, Dh), 2, 0, 3, 1, 4)
        q, k, v = qkv[0], qkv[1], qkv[2]
        scale = Dh ** -0.5
        pos = torch.arange(S)
        off = torch.arange(W) * dil
        idx = pos[:, None] - off[None, :]
        mask = idx >= 0
        idx_c = torch.where(mask, idx, 0).reshape(-1)
        kg = k[:, :, idx_c, :].reshape(B, H, S, W, Dh)
        vg = v[:, :, idx_c, :].reshape(B, H, S, W, Dh)
        logits = torch.einsum("bhsd,bhswd->bhsw", q, kg) * scale
        logits = torch.where(mask[None, None, :, :], logits, -1e9)
        attn = _softmax(logits, axis=-1)
        o = torch.einsum("bhsw,bhswd->bhsd", attn, vg)
        return (lambda x, *d: x.permute(*d))(o, 0, 2, 1, 3).reshape(B, S, D) @ wo

    def _B_ref(x, w_gate, w_up, w_down):
        return (_gelu(x @ w_gate) * (x @ w_up)) @ w_down

    x = A_x
    x = x + _A_ref(_layernorm(x, axis=-1), A_wqkv, A_wo)
    x = x + _B_ref(_layernorm(x, axis=-1), B_w_gate, B_w_up, B_w_down)
    x = x + _A_ref(_layernorm(x, axis=-1), A_wqkv, A_wo)
    x = x + _B_ref(_layernorm(x, axis=-1), B_w_gate, B_w_up, B_w_down)
    return x
```

```python
import re

TRANS = ('v_exp_f32','v_log_f32','v_rcp_f32','v_rsq_f32','v_sqrt_f32','v_sin_f32','v_cos_f32')
RE_V = re.compile(r'\bv\[(\d+):(\d+)\]|\bv(\d+)\b')
RE_S = re.compile(r'\bs\[(\d+):(\d+)\]|\bs(\d+)\b')

def regs_of(tok):
    out=set()
    tok=tok.strip()
    for m in RE_V.finditer(tok):
        if m.group(1) is not None:
            for i in range(int(m.group(1)), int(m.group(2))+1): out.add(('v',i))
        else: out.add(('v',int(m.group(3))))
    for m in RE_S.finditer(tok):
        if m.group(1) is not None:
            for i in range(int(m.group(1)), int(m.group(2))+1): out.add(('s',i))
        else: out.add(('s',int(m.group(3))))
    if re.search(r'\bvcc\b',tok): out.add(('s','vcc'))
    if re.search(r'\bexec\b',tok): out.add(('s','exec'))
    if re.search(r'\bm0\b',tok): out.add(('s','m0'))
    return out

class Ins:
    def __init__(self, text):
        self.text=text.strip()
        t=self.text.split(';')[0].strip()
        parts=t.split(None,1)
        self.op=parts[0]
        rest=parts[1] if len(parts)>1 else ''
        ops=[]; cur=''; depth=0
        for ch in rest:
            if ch=='[': depth+=1
            if ch==']': depth-=1
            if ch==',' and depth==0:
                ops.append(cur.strip()); cur=''
            else: cur+=ch
        if cur.strip(): ops.append(cur.strip())
        self.mods=''
        if ops:
            last=ops[-1].split(None,1)
            if len(last)>1:
                ops[-1]=last[0]; self.mods=last[1]
        self.ops=ops
        op=self.op
        self.w=set(); self.r=set()
        self.kind='salu'
        self.passes=0; self.srcC=set(); self.srcAB=set()
        self.trans=False; self.dpp=False; self.widestore=set(); self.ldsdma=False
        R=lambda i: regs_of(ops[i]) if i<len(ops) else set()
        if op.startswith('v_mfma'):
            self.kind='mfma'
            self.passes = 8 if '32x32x16' in op else 4
            self.w=R(0); self.srcAB=R(1)|R(2); self.srcC=R(3); self.r=self.srcAB|self.srcC
        elif op.startswith('v_'):
            self.kind='valu'
            base=op.replace('_e32','').replace('_e64','').replace('_dpp','')
            self.trans = base in TRANS
            self.dpp = ('quad_perm' in t or 'row_' in t or op.endswith('_dpp'))
            if base.startswith('v_cmp'):
                self.w=R(0)
                for i in range(1,len(ops)): self.r|=R(i)
            elif base.startswith('v_permlane') and 'swap' in base:
                self.w=R(0)|R(1); self.r=R(0)|R(1)
            elif base in ('v_readfirstlane_b32','v_readlane_b32'):
                self.w=R(0)
                for i in range(1,len(ops)): self.r|=R(i)
            elif base in ('v_add_co_u32','v_sub_co_u32','v_addc_co_u32','v_subb_co_u32'):
                self.w=R(0)|R(1)
                for i in range(2,len(ops)): self.r|=R(i)
            else:
                self.w=R(0)
                for i in range(1,len(ops)): self.r|=R(i)
                if base in ('v_fmac_f32','v_dot2c_f32_bf16','v_pk_fmac_f16'): self.r|=R(0)
                if base=='v_cndmask_b32' and len(ops)==3: self.r.add(('s','vcc'))
            self.base=base
        elif op.startswith('ds_'):
            self.kind='lds'
            if op.startswith('ds_read') or op.startswith('ds_bpermute') or op.startswith('ds_swizzle'):
                self.w=R(0)
                for i in range(1,len(ops)): self.r|=R(i)
            else:
                for i in range(len(ops)): self.r|=R(i)
        elif op.startswith('buffer_') or op.startswith('global_'):
            self.kind='vmem'
            lds = re.search(r'\blds\b', self.mods) is not None
            self.ldsdma=lds
            if 'load' in op and not lds:
                self.w=R(0)
                for i in range(1,len(ops)): self.r|=R(i)
            elif 'load' in op and lds:
                for i in range(len(ops)): self.r|=R(i)
                self.r.add(('s','m0'))
            elif op.startswith('buffer_store') :
                for i in range(len(ops)): self.r|=R(i)
                if 'x3' in op or 'x4' in op: self.widestore=R(0)
            elif op.startswith('global_store'):
                for i in range(len(ops)): self.r|=R(i)
                if 'x3' in op or 'x4' in op: self.widestore=R(1)
            elif 'inv' in op or 'wbl2' in op:
                pass
            else:
                for i in range(len(ops)): self.r|=R(i)
        elif op.startswith('s_load') or op in ('s_memtime','s_memrealtime'):
            self.kind='smem'
            self.w=R(0)
            for i in range(1,len(ops)): self.r|=R(i)
        else:
            self.kind='salu'
            if op in ('s_waitcnt','s_nop','s_barrier','s_branch','s_endpgm','s_setprio','s_sleep') or op.startswith('s_cbranch'):
                self.kind='ctl'
            elif op.startswith('s_cmp'):
                for i in range(len(ops)): self.r|=R(i)
            else:
                self.w=R(0)
                for i in range(1,len(ops)): self.r|=R(i)
                if 'saveexec' in op: self.w.add(('s','exec'))
        self.states = 1
        if op=='s_nop': self.states=int(ops[0],0)+1

class Label:
    def __init__(self,name): self.name=name
class Raw:
    def __init__(self,text): self.text=text

def vregs(S): return {x for x in S if x[0]=='v'}
def sregs(S): return {x for x in S if x[0]=='s'}

def need_states(prev, cur):
    n=0
    pk, ck = prev.kind, cur.kind
    if pk=='valu':
        pw=vregs(prev.w); psw=sregs(prev.w)
        if ck=='mfma' and pw & cur.r: n=max(n,2)
        if ck=='valu':
            if prev.trans and not cur.trans and (pw & (cur.r|cur.w)): n=max(n,1)
            if prev.trans and cur.trans and (pw & cur.r): n=max(n,1)
            if cur.dpp and (pw & cur.r): n=max(n,2)
            if cur.base.startswith('v_permlane') and (pw & cur.r): n=max(n,2)
            if cur.base in ('v_readfirstlane_b32','v_readlane_b32') and (pw & cur.r): n=max(n,1)
            if psw & cur.r: n=max(n,2)
        if ck=='vmem' and (psw & cur.r): n=max(n,5)
        if ck in('salu',) and (psw & cur.r): n=max(n,2)
        if ('s','exec') in psw: n=max(n,5)
    if pk=='mfma':
        D=prev.w
        big = 12 if prev.passes==8 else 8
        if ck=='mfma':
            if D & cur.srcAB: n=max(n,big)
            if D & cur.srcC:
                if cur.srcC==D and cur.passes==prev.passes: pass
                else: n=max(n,10 if prev.passes==8 else 6)
            elif D & cur.w:
                n=max(n,10 if prev.passes==8 else 6)
        elif ck in('valu','vmem','lds'):
            if D & (cur.r|cur.w): n=max(n,big)
            if ck=='valu' and (prev.srcC & cur.w): n=max(n,7 if prev.passes==8 else 3)
    if pk=='vmem' and prev.widestore:
        if prev.widestore & cur.w: n=max(n,2)
    if pk=='salu' and ('s','m0') in prev.w:
        if ck=='vmem' and cur.ldsdma: n=max(n,1)
    return n

class Stream:
    def __init__(self,name):
        self.name=name
        self.items=[]
        self.vm_issued=0; self.vm_done=0
        self.lg_issued=0; self.lg_done=0
        self.barriers=[]
        self.uid=0
        self.pending={}
        self.check=True
    def label(self,name): self.items.append(Label(name))
    def newlabel(self,pfx='L'):
        self.uid+=1; return f"{pfx}_{self.name}_{self.uid}"
    def comment(self,t): self.items.append(Raw('    ; '+t))
    def __call__(self,text):
        tok=None
        for line in text.strip().split('\n'):
            line=line.strip()
            if not line or line.startswith(';'): continue
            ins=Ins(line)
            if self.check:
                for rg in (ins.r|ins.w):
                    t=self.pending.get(rg)
                    if t is not None:
                        done = self.vm_done if t[0]=='vm' else self.lg_done
                        if t[1]>done:
                            if rg in ins.w and rg not in ins.r and ((t[0]=='vm' and ins.kind=='vmem') or (t[0]=='lg' and ins.kind=='lds')):
                                pass
                            else:
                                raise Exception(f"[{self.name}] reg {rg} has pending load {t} (done {done}) at: {line}")
                        else:
                            del self.pending[rg]
            self.items.append(ins)
            if ins.kind=='vmem':
                self.vm_issued+=1; tok=('vm',self.vm_issued)
                assert self.vm_issued-self.vm_done<=63, f"vmcnt overflow in {self.name}: {line}"
            elif ins.kind=='lds':
                self.lg_issued+=1; tok=('lg',self.lg_issued)
                assert self.lg_issued-self.lg_done<=15, f"lgkmcnt overflow in {self.name}: {line}"
            elif ins.kind=='smem':
                raise Exception("use smem() for scalar loads")
            if ins.kind in('vmem','lds'):
                for rg in ins.w: self.pending[rg]=tok
        return tok
    def smem(self,text):
        for line in text.strip().split('\n'):
            if line.strip(): self.items.append(Ins(line.strip()))
    def wait(self,*toks,vm_all=False,lg_all=False):
        vmN=None; lgN=None
        for t in toks:
            if t is None: continue
            if t[0]=='vm':
                if t[1]>self.vm_done:
                    n=self.vm_issued-t[1]; vmN=n if vmN is None else min(vmN,n)
            else:
                if t[1]>self.lg_done:
                    n=self.lg_issued-t[1]; lgN=n if lgN is None else min(lgN,n)
        if vm_all and self.vm_issued>self.vm_done: vmN=0
        if lg_all and self.lg_issued>self.lg_done: lgN=0
        parts=[]
        if vmN is not None:
            vmN=min(vmN,63); parts.append(f"vmcnt({vmN})"); self.vm_done=max(self.vm_done,self.vm_issued-vmN)
        if lgN is not None:
            lgN=min(lgN,15); parts.append(f"lgkmcnt({lgN})"); self.lg_done=max(self.lg_done,self.lg_issued-lgN)
        if parts: self.items.append(Ins("s_waitcnt "+" ".join(parts)))
    def force_wait(self,vm=False,lg=False):
        parts=[]
        if vm: parts.append("vmcnt(0)"); self.vm_done=self.vm_issued
        if lg: parts.append("lgkmcnt(0)"); self.lg_done=self.lg_issued
        self.items.append(Ins("s_waitcnt "+" ".join(parts)))
    def barrier(self,name):
        self.barriers.append(name)
        self.items.append(Raw(f"    ; barrier {name}"))
        self.items.append(Ins("s_barrier"))
    def render(self):
        out=[]; hist=[]
        for it in self.items:
            if isinstance(it,Label):
                out.append(f"{it.name}:"); continue
            if isinstance(it,Raw):
                out.append(it.text); continue
            need=0; dist=0
            for p in reversed(hist[-24:]):
                req=need_states(p,it)
                if req>dist: need=max(need,req-dist)
                dist+=p.states
                if dist>=20: break
            while need>0:
                k=min(need,16)
                nop=Ins(f"s_nop {k-1}")
                hist.append(nop); out.append("    "+nop.text); need-=k
            hist.append(it); out.append("    "+it.text)
        return "\n".join(out)
```

```python
import sys, os
sys.path.insert(0, os.path.dirname(os.path.abspath(__file__)))
from core import *

KNAME = "interleave_layers__sliding_local_dilated__geglu_ffn__prompt_kernel"

FLAGS=0x0000; IDS=0x1000; HFLAGS=0x2000; EPOCH=0x3000
STATS=0x10000
HSTATS=0x110000
HALOX=0x140000
XB=[0x400000,0x600000,0x800000,0xA00000]
OB=[0xC00000,0xE00000]
HB=[0x1000000,0x1600000]
WS_USED=0x1C00000
TILE=32768; HTILE=172*512
RING=0; SLOT=16384; NSLOT=8
SCR=131072
KBUF=SCR; VBUF=SCR+9216
CST=158720
MISC=163328
LDS_BYTES=163840
ZERO8=MISC+16

C_GELU=-2.0*0.7978845608028654*1.4426950408889634
def f2u(x):
    import struct
    return struct.unpack('<I',struct.pack('<f',x))[0]
def hexf(x): return "0x%08x"%f2u(x)

class Cfg:
    stop_after = 99
    LA = 4
    NA = 6
    budget = 3.0
    timeout = 1<<18

cfg=Cfg()

def srd(S, r, lo, hi, size):
    S(f"s_mov_b32 s{r}, s{lo}")
    S(f"s_mov_b32 s{r+1}, s{hi}")
    S(f"s_mov_b32 s{r+2}, {size}")
    S(f"s_mov_b32 s{r+3}, 0x00020000")

def csel(S, dst, a, b):
    S(f"s_mov_b32 s{dst}, {a}")
    S(f"s_cselect_b32 s{dst}, s{dst}, {b}")

def mov64(S, r, val):
    S(f"s_mov_b32 s{r}, 0x{val & 0xffffffff:08x}")
    S(f"s_mov_b32 s{r+1}, 0x{(val>>32) & 0xffffffff:08x}")

def poll(S, voff, vtmp, srdreg, s_expect, s_mask, s_cnt, s_tmp, span=16):
    L=S.newlabel('Lpoll'); D=S.newlabel('Lpdone')
    S(f"s_mov_b32 s{s_cnt}, 0")
    S.label(L)
    S(f"buffer_load_dword v{vtmp}, v{voff}, s[{srdreg}:{srdreg+3}], 0 offen sc1")
    S(f"s_add_u32 s{s_cnt}, s{s_cnt}, 1")
    S.force_wait(vm=True)
    S(f"v_subrev_u32 v{vtmp}, s{s_expect}, v{vtmp}")
    S(f"v_cmp_gt_u32 vcc, {span}, v{vtmp}")
    S(f"s_and_b64 s[{s_tmp}:{s_tmp+1}], vcc, s[{s_mask}:{s_mask+1}]")
    S(f"s_cmp_eq_u64 s[{s_tmp}:{s_tmp+1}], s[{s_mask}:{s_mask+1}]")
    S(f"s_cbranch_scc1 {D}")
    S(f"s_cmp_lt_u32 s{s_cnt}, {cfg.timeout}")
    S(f"s_cbranch_scc1 {L}")
    S.label(D)
    S("s_nop 1")

def stats_to_frag(S_emit, st, vt, nm, out_rstd=None, gelu=None, s_c=None):
    ops=[]
    a=lambda t,c=1: ops.append((c,t))
    idx_s=[st[2*i] for i in range(16)]; idx_q=[st[2*i+1] for i in range(16)]
    for arr in (idx_s, idx_q):
        n=16
        cur=list(arr)
        while len(cur)>1:
            nxt=[]
            for i in range(0,len(cur),2):
                a(f"v_add_f32 v{cur[i]}, v{cur[i]}, v{cur[i+1]}")
                nxt.append(cur[i])
            cur=nxt
    s=idx_s[0]; q=idx_q[0]
    t0,t1,t2,t3=vt
    a(f"v_mul_f32 v{t0}, {hexf(1/512)}, v{s}")
    a(f"v_mul_f32 v{t1}, {hexf(1/512)}, v{q}")
    a(f"v_fma_f32 v{t1}, -v{t0}, v{t0}, v{t1}")
    a(f"v_max_f32 v{t1}, 0, v{t1}")
    a(f"v_cvt_pk_bf16_f32 v{t2}, v{t0}, v{t0}")
    a(f"v_cvt_pk_bf16_f32 v{t1}, v{t1}, v{t1}")
    a(f"v_xor_b32 v{nm}, 0x80008000, v{t2}")
    a(f"v_and_b32 v{t1}, 0xffff0000, v{t1}")
    a(f"v_and_b32 v{nm+1}, 0xffff, v{nm}")
    a(f"v_add_f32 v{t1}, {hexf(1e-5)}, v{t1}")
    a(f"v_cvt_pk_bf16_f32 v{t1}, v{t1}, v{t1}")
    a(f"v_and_b32 v{t1}, 0xffff0000, v{t1}")
    a(f"v_sqrt_f32 v{t1}, v{t1}",2)
    a(f"v_cvt_pk_bf16_f32 v{t1}, v{t1}, v{t1}")
    a(f"v_and_b32 v{t1}, 0xffff0000, v{t1}")
    if gelu is None:
        a(f"v_rcp_f32 v{out_rstd}, v{t1}",2)
    else:
        A,B,inv=gelu
        a(f"v_rcp_f32 v{t0}, v{t1}",2)
        a(f"v_mul_f32 v{inv}, v{t1}, v{t1}")
        a(f"v_mul_f32 v{A}, {hexf(C_GELU)}, v{t0}")
        a(f"v_mul_f32 v{t2}, v{t0}, v{t0}")
        a(f"v_mul_f32 v{t2}, {hexf(0.044715)}, v{t2}")
        a(f"v_mul_f32 v{B}, v{A}, v{t2}")
    return ops

def mfma_stream(S, steps, fillers, ring_base=40):
    LA=cfg.LA; NA=cfg.NA
    n=len(steps)
    atok=[None]*n; areg=[None]*n
    ringi=[0]
    def issue_reads(i):
        st=steps[i]
        if st.get('pre_reads'): st['pre_reads'](S)
        a=st['a']
        if a[0]=='tr':
            r=ring_base+4*(ringi[0]%NA); ringi[0]+=1
            S(f"ds_read_b64_tr_b16 v[{r}:{r+1}], v{a[1]} offset:{a[2]}")
            atok[i]=S(f"ds_read_b64_tr_b16 v[{r+2}:{r+3}], v{a[1]} offset:{a[2]+256}")
            areg[i]=r
        else:
            areg[i]=a[1]
    fi=[0]
    def emit_fill(i, budget):
        used=0
        while fi[0]<len(fillers):
            ms,cost,f=fillers[fi[0]]
            if ms>i: break
            if used+cost>budget+1e-9 and used>0: break
            if used>=budget: break
            if callable(f): f(S)
            else: S(f)
            used+=cost; fi[0]+=1
    for i in range(min(LA,n)): issue_reads(i)
    for i in range(n):
        st=steps[i]
        if st.get('need_fill') is not None:
            while fi[0]<st['need_fill']:
                ms,cost,f=fillers[fi[0]]
                if callable(f): f(S)
                else: S(f)
                fi[0]+=1
        toks=[atok[i]]
        if st['a'][0]=='reg' and st['a'][2] is not None: toks.append(st['a'][2]())
        if st.get('btok'): toks.append(st['btok']())
        S.wait(*toks)
        shape='32x32x16' if st.get('shape',32)==32 else '16x16x32'
        nacc=16 if shape=='32x32x16' else 4
        S(f"v_mfma_f32_{shape}_bf16 v[{st['acc']}:{st['acc']+nacc-1}], v[{areg[i]}:{areg[i]+3}], v[{st['b']}:{st['b']+3}], {st['c']}")
        if i+LA<n: issue_reads(i+LA)
        b=cfg.budget
        if st.get('post'):
            st['post'](S); b-=st.get('postcost',1)
        if st.get('after'): st['after'](S); b-=1
        emit_fill(i,b)
    while fi[0]<len(fillers):
        ms,cost,f=fillers[fi[0]]
        if callable(f): f(S)
        else: S(f)
        fi[0]+=1

def accs(base): return f"v[{base}:{base+15}]"

def gen_prologue():
    S=Stream('P')
    S("s_cmp_ge_u32 s2, 256")
    S("s_cbranch_scc1 L_end")
    S.smem("""s_load_dwordx4 s[4:7], s[0:1], 0
s_load_dwordx2 s[8:9], s[0:1], 16
s_load_dwordx4 s[12:15], s[0:1], 32
s_load_dwordx2 s[10:11], s[0:1], 48
s_load_dwordx2 s[16:17], s[0:1], 56
s_load_dwordx2 s[18:19], s[0:1], 72""")
    S("v_lshrrev_b32 v1, 6, v0")
    S("v_and_b32 v0, 63, v0")
    S("v_readfirstlane_b32 s20, v1")
    S("s_and_b32 s25, s2, 7")
    S("s_lshr_b32 s26, s2, 3")
    S("s_lshr_b32 s27, s26, 4")
    S("s_lshl_b32 s21, s25, 1")
    S("s_add_u32 s21, s21, s27")
    S("s_and_b32 s22, s26, 15")
    S("s_lshl_b32 s25, s21, 7")
    S(f"s_add_u32 s25, s25, {EPOCH}")
    S("s_add_u32 s26, s25, 128")
    S.items.append(Ins("s_waitcnt lgkmcnt(0)"))
    S.smem("""s_load_dword s23, s[18:19], s25
s_load_dword s24, s[18:19], s26""")
    srd(S,28,18,19,WS_USED)
    S("v_lshlrev_b32 v1, 4, v0")
    S("s_cmp_ge_u32 s20, 4")
    S("s_cbranch_scc1 L_helper")
    return S

NITEMS=33
def slot_imm(i):
    return (i*SLOT)

def gen_C():
    S=Stream('C')
    S("s_nop 4")
    S("s_setprio 2")
    srd(S,40,4,5,2048*1024)
    srd(S,44,16,17,2048*1024)
    srd(S,32,18,19,0)
    srd(S,36,18,19,WS_USED)
    S("s_and_b32 s50, s20, 1")
    S("s_lshr_b32 s51, s20, 1")
    S("s_lshr_b32 s52, s22, 3")
    S("s_and_b32 s53, s22, 7")
    S("s_lshl_b32 s54, s21, 2")
    S("s_add_u32 s54, s54, s20")
    S("s_lshl_b32 s55, s21, 2")
    S("s_lshl_b32 s57, s52, 1")
    S("s_add_u32 s55, s55, s57")
    S("s_add_u32 s55, s55, s50")
    S("v_lshrrev_b32 v2, 5, v0")
    S("v_lshlrev_b32 v2, 9, v2")
    S("v_and_b32 v7, 15, v0")
    S("v_lshrrev_b32 v7, 2, v7")
    S("v_lshl_add_u32 v2, v7, 6, v2")
    S("v_bfe_u32 v7, v0, 4, 1")
    S("v_lshl_add_u32 v2, v7, 5, v2")
    S("v_and_b32 v7, 3, v0")
    S("v_lshl_add_u32 v2, v7, 3, v2")
    S("s_lshl_b32 s57, s21, 8")
    S(f"s_add_u32 s57, s57, {FLAGS}")
    S("v_lshlrev_b32 v3, 2, v0")
    S("v_add_u32 v3, s57, v3")
    S("s_lshl_b32 s58, s22, 4")
    S("s_lshl_b32 s59, s20, 2")
    S("s_add_u32 s58, s58, s59")
    S("s_add_u32 s58, s58, s57")
    S("v_mov_b32 v4, s58")
    for r in (30,31,34,35,38,39): S(f"v_mov_b32 v{r}, 0")
    S("v_lshrrev_b32 v8, 2, v0")
    S("v_and_b32 v9, 3, v0")
    S("s_lshl_b32 s57, s22, 6")
    S("v_lshlrev_b32 v10, 4, v9")
    S("v_add_u32 v10, s57, v10")
    S("s_lshl_b32 s57, s21, 7")
    S("s_lshl_b32 s58, s20, 5")
    S("s_add_u32 s58, s58, s57")
    S("v_add_u32 v11, s58, v8")
    S("v_lshl_add_u32 v11, v11, 10, v10")
    tA=S("buffer_load_dwordx4 v[16:19], v11, s[40:43], 0 offen")
    S("v_add_u32 v12, 0x4000, v11")
    tB=S("buffer_load_dwordx4 v[20:23], v12, s[40:43], 0 offen")
    S("s_sub_i32 s59, s57, 16")
    S("v_add_u32 v12, s59, v8")
    S("v_max_i32 v12, 0, v12")
    S("v_lshl_add_u32 v12, v12, 10, v10")
    tH=S("buffer_load_dwordx4 v[24:27], v12, s[40:43], 0 offen")
    S.items.append(Ins("s_waitcnt lgkmcnt(0)"))
    S("s_getreg_b32 s60, hwreg(HW_REG_XCC_ID)")
    S("s_and_b32 s60, s60, 7")
    S("s_add_u32 s60, s60, s23")
    S("s_add_u32 s60, s60, 16")
    S("s_lshl_b32 s57, s21, 7")
    S(f"s_add_u32 s57, s57, {IDS}")
    S("v_lshlrev_b32 v13, 2, v0")
    S("v_add_u32 v13, s57, v13")
    S("s_lshl_b32 s58, s22, 2")
    S("s_add_u32 s58, s58, s57")
    S("v_mov_b32 v14, s58")
    S("v_mov_b32 v15, s60")
    Lk=S.newlabel('Lskipid')
    S("s_cmp_lg_u32 s20, 0")
    S(f"s_cbranch_scc1 {Lk}")
    S("s_mov_b64 exec, 1")
    S("buffer_store_dword v15, v14, s[28:31], 0 offen sc1")
    S("s_mov_b64 exec, -1")
    S.label(Lk)
    S.vm_issued+=0
    S("s_add_u32 s68, s23, 16")
    mov64(S,64,0xFFFF)
    poll(S, 13, 15, 28, 68, 64, 69, 66, span=8)
    S.vm_done=S.vm_issued
    S("s_sub_u32 s60, s60, s68")
    S("v_cmp_eq_u32 vcc, s60, v15")
    S("s_and_b64 s[66:67], vcc, s[64:65]")
    S("s_cmp_eq_u64 s[66:67], s[64:65]")
    S(f"s_cselect_b32 s34, {WS_USED}, 0")
    S(f"s_cselect_b32 s38, 0, {WS_USED}")
    if os.environ.get('FORCE_SLOW'):
        S("s_mov_b32 s34, 0"); S(f"s_mov_b32 s38, {WS_USED}")
    S("v_mov_b32 v7, 0x3f803f80")
    outs=[]
    for gi,(base) in enumerate((16,20,24)):
        sm=64+2*gi; sq=65+2*gi
        S(f"v_dot2_f32_bf16 v{sm}, v{base}, v7, 0")
        S(f"v_dot2_f32_bf16 v{sq}, v{base}, v{base}, 0")
        for d in range(1,4):
            S(f"v_dot2_f32_bf16 v{sm}, v{base+d}, v7, v{sm}")
            S(f"v_dot2_f32_bf16 v{sq}, v{base+d}, v{base+d}, v{sq}")
    for qp in ("[1,0,3,2]","[2,3,0,1]"):
        for r in range(64,70):
            S(f"v_add_f32_dpp v{r}, v{r}, v{r} quad_perm:{qp} row_mask:0xf bank_mask:0xf")
    mov64(S,66,0x2222222222222222)
    for gi in range(3):
        S(f"v_cndmask_b32 v{72+gi}, v{64+2*gi}, v{65+2*gi}, s[66:67]")
    S("v_lshlrev_b32 v12, 9, v9")
    S("v_lshl_add_u32 v12, v8, 4, v12")
    S("v_lshlrev_b32 v13, 2, v9")
    S("v_lshl_add_u32 v13, v8, 4, v13")
    S("s_lshl_b32 s57, s54, 15")
    S("s_lshl_b32 s58, s22, 11")
    S("s_add_u32 s57, s57, s58")
    S(f"s_add_u32 s57, s57, {XB[0]}")
    S("s_lshl_b32 s59, s21, 15")
    S("s_add_u32 s59, s59, s58")
    S(f"s_add_u32 s59, s59, {HALOX}")
    def st2(data, voff, soff, imm, w='x4'):
        S(f"buffer_store_dword{w} {data}, v{voff}, s[32:35], s{soff} offen offset:{imm}")
        S(f"buffer_store_dword{w} {data}, v{voff}, s[36:39], s{soff} offen offset:{imm} sc1")
    st2("v[16:19]",12,57,0); st2("v[20:23]",12,57,256); st2("v[24:27]",12,59,256)
    S("s_lshr_b32 s60, s22, 1")
    S("s_lshl_b32 s60, s60, 9")
    S("s_and_b32 s61, s22, 1")
    S("s_lshl_b32 s61, s61, 3")
    S("s_add_u32 s60, s60, s61")
    S("s_lshl_b32 s57, s54, 12")
    S("s_add_u32 s57, s57, s60")
    S(f"s_add_u32 s57, s57, {STATS}")
    S("s_lshl_b32 s59, s21, 12")
    S("s_add_u32 s59, s59, s60")
    S(f"s_add_u32 s59, s59, {HSTATS}")
    mov64(S,66,0x3333333333333333)
    S("s_mov_b64 exec, s[66:67]")
    st2("v72",13,57,0,''); st2("v73",13,57,256,''); st2("v74",13,59,256,'')
    S("s_mov_b64 exec, -1")
    S("s_mov_b32 s49, 1")
    def set_flag():
        S.force_wait(vm=True)
        S("s_add_u32 s57, s23, s49")
        S("v_mov_b32 v7, s57")
        S("s_mov_b64 exec, 1")
        S("buffer_store_dword v7, v4, s[32:35], 0 offen")
        S("buffer_store_dword v7, v4, s[36:39], 0 offen sc1")
        S("s_mov_b64 exec, -1")
    set_flag()
    if cfg.stop_after==0:
        S("s_branch L_fin"); return S
    S("s_mov_b32 s48, 0")
    S.label("L_layer")
    S("s_nop 4")
    S.vm_done=S.vm_issued; S.lg_done=S.lg_issued
    S.force_wait(vm=True,lg=True)
    S("s_lshl_b32 s56, s48, 14")
    S("s_cmp_eq_u32 s48, 0")
    csel(S,70,XB[0],XB[2])
    csel(S,71,STATS,STATS+2*0x40000)
    csel(S,72,OB[0],OB[1])
    csel(S,73,XB[1],XB[3])
    csel(S,74,STATS+0x40000,STATS+3*0x40000)
    csel(S,75,HB[0],HB[1])
    def slot(dst_s, i, extra_s=None, extra_imm=0):
        S(f"s_add_u32 s{dst_s}, s56, {i*SLOT}")
        if extra_s is not None: S(f"s_add_u32 s{dst_s}, s{dst_s}, s{extra_s}")
        S(f"s_and_b32 s{dst_s}, s{dst_s}, 0x1ffff")
        if extra_imm: S(f"s_add_u32 s{dst_s}, s{dst_s}, {extra_imm}")
    def setaddr(vreg, i, extra_s=None, add_s=None):
        def f(S):
            slot(57,i,extra_s)
            if add_s is not None: S(f"s_add_u32 s57, s57, s{add_s}")
            S(f"v_add_u32 v{vreg}, s57, v2")
        return f
    def expect():
        S("s_add_u32 s68, s23, s49")
    def bump(): S("s_add_u32 s49, s49, 1")

    S("s_mov_b32 s57, 0x11111111")
    S("s_lshl_b32 s57, s57, s20")
    S("s_mov_b32 s58, 0x55555555")
    S("s_lshl_b32 s58, s58, s50")
    S("s_cmp_eq_u32 s51, 0")
    S("s_cselect_b32 s59, s58, 0")
    S("s_cselect_b32 s60, 0, s58")
    S("s_cmp_eq_u32 s48, 0")
    S("s_cselect_b32 s64, s57, s59")
    S("s_cselect_b32 s65, s57, s60")
    expect()
    poll(S,3,7,28,68,64,69,66)
    S("s_lshl_b32 s78, s54, 15")
    S("s_add_u32 s78, s78, s70")
    S("s_lshl_b32 s79, s54, 12")
    S("s_add_u32 s79, s79, s71")
    btok={}
    def ldfrag(s, sbase=78):
        def f(S):
            if s%4==0 and s>0: S(f"s_add_u32 s{sbase}, s{sbase}, 4096")
            btok[s]=S(f"buffer_load_dwordx4 v[{128+4*(s%32)}:{131+4*(s%32)}], v1, s[28:31], s{sbase} offen offset:{(s%4)*1024} sc1")
        return f
    PF=8
    for s in range(PF): ldfrag(s)(S)
    S("v_and_b32 v7, 31, v0")
    S("v_lshlrev_b32 v7, 4, v7")
    st_regs=list(range(96,128))
    sttok=None
    for u in range(8):
        sttok=S(f"buffer_load_dwordx4 v[{96+4*u}:{99+4*u}], v7, s[28:31], s79 offen offset:{u*512} sc1")
    S.barrier("Ba")
    AK,AV,AQ=64,80,96
    steps=[]; fill=[]
    for s in range(32):
        for t,(acc,vr,it) in enumerate(((AK,5,0),(AV,6,1))):
            d=dict(acc=acc,c=('0' if s==0 else accs(acc)),a=('tr',vr,(s%16)*1024),b=128+4*s,btok=(lambda s=s: btok[s]))
            if s%16==0: d['pre_reads']=setaddr(vr, it+2*(s//16))
            if t==1 and s+PF<32:
                d['post']=ldfrag(s+PF); d['postcost']=1.5 if (s+PF)%4==0 else 1
            steps.append(d)
    def waitst(S): S.wait(sttok)
    fill.append((10,0,waitst))
    for c,t in stats_to_frag(S, st_regs, (8,9,10,11), 28, out_rstd=12): fill.append((10,c,t))
    cstok={}
    def after_kv(S):
        S.barrier("Bb")
        S(f"v_lshlrev_b32 v13, 3, v0")
        S(f"v_add_u32 v13, {CST}, v13")
        cstok['k']=S(f"ds_read_b64 v[32:33], v13 offset:{0*512}")
        cstok['v']=S(f"ds_read_b64 v[36:37], v13 offset:{1*512}")
    steps[-1]['after']=after_kv
    nkv=len(steps)
    qsteps=[]
    for s in range(32):
        d=dict(acc=AQ,c=('0' if s==0 else accs(AQ)),a=('tr',5,(s%16)*1024),b=128+4*s)
        if s%16==0: d['pre_reads']=setaddr(5, 4+s//16)
        qsteps.append(d)
    corrK=dict(acc=AK,c=accs(AK),a=('reg',32,lambda: cstok['k']),b=28)
    corrV=dict(acc=AV,c=accs(AV),a=('reg',36,lambda: cstok['v']),b=28)
    def rdq(S): cstok['q']=S(f"ds_read_b64 v[32:33], v13 offset:{2*512}")
    corrV['post']=rdq
    corrQ=dict(acc=AQ,c=accs(AQ),a=('reg',32,lambda: cstok['q']),b=28)
    steps += qsteps[:4]+[corrK,corrV]+qsteps[4:]+[corrQ]
    kvdone=nkv+4+2+3
    S_k=[]
    for hd in range(2):
        for i in range(8):
            fill.append((kvdone,1,f"v_mul_f32 v{AK+8*hd+i}, v{AK+8*hd+i}, v12"))
        for i in range(4):
            fill.append((kvdone,1,f"v_cvt_pk_bf16_f32 v{16+4*hd+i}, v{AK+8*hd+2*i}, v{AK+8*hd+2*i+1}"))
    def kvaddr(S):
        S("v_and_b32 v14, 31, v0")
        S("s_lshl_b32 s57, s20, 5")
        S("s_add_u32 s57, s57, 16")
        S("v_add_u32 v14, s57, v14")
        S("v_lshlrev_b32 v14, 4, v14")
        S(f"v_add_u32 v14, {SCR}, v14")
        S("v_lshrrev_b32 v15, 5, v0")
        S("v_mul_u32_u24 v15, 2304, v15")
        S("v_add_u32 v24, v14, v15")
        S("v_add_u32 v25, v24, v15")
    fill.append((kvdone,7,kvaddr))
    for hd in range(2):
        fill.append((kvdone,1,f"ds_write_b128 v24, v[{16+4*hd}:{19+4*hd}] offset:{KBUF-SCR+hd*4608}"))
    for q in range(4):
        for i in range(4):
            fill.append((kvdone,1,f"v_mul_f32 v{AV+4*q+i}, v{AV+4*q+i}, v12"))
        hd,part=q//2,q%2
        fill.append((kvdone,1,f"ds_write_b128 v25, v[{AV+4*q}:{AV+4*q+3}] offset:{VBUF-SCR+hd*9216+part*2304}"))
    mfma_stream(S,steps,fill)
    for i in range(16): S(f"v_mul_f32 v{AQ+i}, v{AQ+i}, v12")
    for i in range(8): S(f"v_cvt_pk_bf16_f32 v{112+i}, v{AQ+2*i}, v{AQ+2*i+1}")
    S.wait(lg_all=True)
    S.barrier("Bc")
    S("v_subrev_u32 v24, 224, v24")
    S("v_subrev_u32 v25, 224, v25")
    KU=[128+4*i for i in range(16)]
    ktok={}
    for hd in range(2):
        for w in range(8):
            if hd==1 and w==7: S.wait(ktok[(0,0)])
            ktok[(hd,w)]=S(f"ds_read_b128 v[{KU[hd*8+w]}:{KU[hd*8+w]+3}], v24 offset:{KBUF-SCR+hd*4608+(14-2*w)*16}")
    SA=[192+i for i in range(8)]; SB=[200+i for i in range(8)]
    for hd,SS in ((0,SA),(1,SB)):
        S.wait(ktok[(hd,7)])
        for d in range(4):
            for w in range(8):
                k=KU[hd*8+w]+d
                S(f"v_dot2_f32_bf16 v{SS[w]}, v{112+4*hd+d}, v{k}, {'0' if d==0 else 'v%d'%SS[w]}")
    VU0=[208+4*i for i in range(12)]+[64+4*i for i in range(4)]
    VU1=[128+4*i for i in range(16)]
    vtok={}
    def rdV(hd,VU,lo,hi):
        for idx in range(lo,hi):
            w,part=idx//2,idx%2
            vtok[(hd,w,part)]=S(f"ds_read_b128 v[{VU[idx]}:{VU[idx]+3}], v25 offset:{VBUF-SCR+hd*9216+part*2304+(14-2*w)*16}")
    rdV(0,VU0,0,14)
    for w in range(8): S(f"v_permlane32_swap_b32 v{SA[w]}, v{SB[w]}")
    for w in range(8): S(f"v_add_f32 v{SA[w]}, v{SA[w]}, v{SB[w]}")
    Lm=S.newlabel('Lnomask')
    S("s_lshl_b32 s57, s21, 2")
    S("s_add_u32 s57, s57, s20")
    S("s_cmp_lg_u32 s57, 0")
    S(f"s_cbranch_scc1 {Lm}")
    S("v_and_b32 v7, 31, v0")
    S(f"v_mov_b32 v26, {hexf(-4e9)}")
    for w in range(1,8):
        S(f"v_cmp_gt_u32 vcc, {2*w}, v7")
        S(f"v_cndmask_b32 v{SA[w]}, v{SA[w]}, v26, vcc")
    S.label(Lm)
    S("s_nop 1")
    cs=0.25*1.4426950408889634
    S(f"v_max3_f32 v26, v{SA[0]}, v{SA[1]}, v{SA[2]}")
    S(f"v_max3_f32 v27, v{SA[3]}, v{SA[4]}, v{SA[5]}")
    S(f"v_max3_f32 v26, v26, v{SA[6]}, v{SA[7]}")
    S(f"v_max_f32 v26, v26, v27")
    S(f"s_mov_b32 s57, {hexf(cs)}")
    S(f"v_mul_f32 v26, {hexf(-cs)}, v26")
    for w in range(8): S(f"v_fma_f32 v{SA[w]}, v{SA[w]}, s57, v26")
    for w in range(8): S(f"v_exp_f32 v{SA[w]}, v{SA[w]}")
    S.wait(vtok[(0,0,1)])
    rdV(0,VU0,14,16)
    S(f"v_add_f32 v26, v{SA[0]}, v{SA[1]}")
    S(f"v_add_f32 v27, v{SA[2]}, v{SA[3]}")
    S(f"v_add_f32 v15, v{SA[4]}, v{SA[5]}")
    S(f"v_add_f32 v14, v{SA[6]}, v{SA[7]}")
    S(f"v_add_f32 v26, v26, v27")
    S(f"v_add_f32 v15, v15, v14")
    S(f"v_add_f32 v26, v26, v15")
    S(f"v_rcp_f32 v26, v26")
    for w in range(8): S(f"v_mul_f32 v{SA[w]}, v{SA[w]}, v26")
    for w in range(8): S(f"v_mov_b32 v{SB[w]}, v{SA[w]}")
    for w in range(8): S(f"v_permlane32_swap_b32 v{SA[w]}, v{SB[w]}")
    def pv(hd,VU,P,cb=None):
        for w in range(8):
            p=P[w]; pe=p&~1
            sel = ("op_sel:[0,0,0] op_sel_hi:[1,0,1]","op_sel:[0,0] op_sel_hi:[1,0]") if p%2==0 else ("op_sel:[0,1,0] op_sel_hi:[1,1,1]","op_sel:[0,1] op_sel_hi:[1,1]")
            for part in range(2):
                S.wait(vtok[(hd,w,part)])
                u=VU[2*w+part]
                for hh in range(2):
                    o=96+8*hd+4*part+2*hh
                    if w==0:
                        S(f"v_pk_mul_f32 v[{o}:{o+1}], v[{u+2*hh}:{u+2*hh+1}], v[{pe}:{pe+1}] {sel[1]}")
                    else:
                        S(f"v_pk_fma_f32 v[{o}:{o+1}], v[{u+2*hh}:{u+2*hh+1}], v[{pe}:{pe+1}], v[{o}:{o+1}] {sel[0]}")
                if cb: cb(2*w+part)
    pv(0,VU0,SA,cb=lambda idx: (rdV(1,VU1,idx-2,idx-1) if idx>=2 else None))
    rdV(1,VU1,14,15)
    S.wait(vtok[(1,0,0)])
    rdV(1,VU1,15,16)
    pv(1,VU1,SB)
    for i in range(8): S(f"v_cvt_pk_bf16_f32 v{16+i}, v{96+2*i}, v{97+2*i}")
    for b in (16,20):
        S(f"v_permlane32_swap_b32 v{b}, v{b+2}")
        S(f"v_permlane32_swap_b32 v{b+1}, v{b+3}")
    S("s_lshl_b32 s57, s54, 15")
    S("s_lshl_b32 s58, s22, 11")
    S("s_add_u32 s57, s57, s58")
    S("s_add_u32 s57, s57, s72")
    st2("v[16:19]",1,57,0); st2("v[20:23]",1,57,1024)
    bump(); set_flag()
    if cfg.stop_after==1:
        S("s_branch L_fin"); return S

    def gemm2(name, nsteps, s_act, act_tile_bytes, khalf_bytes, s_res, mask_fn, items_fn, bars, s_out, s_sout, final):
        S.comment(f"======== {name} ========")
        AO,AT=64,80
        S("v_and_b32 v7, 31, v0")
        S("v_lshlrev_b32 v7, 4, v7")
        S("v_lshrrev_b32 v8, 5, v0")
        S("v_lshl_add_u32 v7, v8, 3, v7")
        S("s_lshl_b32 s57, s55, 15")
        S("s_lshl_b32 s58, s53, 12")
        S("s_add_u32 s57, s57, s58")
        S("s_lshl_b32 s58, s51, 11")
        S("s_add_u32 s80, s57, s58")
        S(f"s_add_u32 s57, s80, s{s_res}")
        rt=None
        if name=="P2":
            Lx=S.newlabel('Lresx'); Ly=S.newlabel('Lresd')
            S("s_cmp_eq_u32 s48, 0")
            S(f"s_cbranch_scc1 {Lx}")
        for q in range(4):
            rt=S(f"buffer_load_dwordx2 v[{16+2*q}:{17+2*q}], v7, s[28:31], s57 offen offset:{q*512} sc1")
        if name=="P2":
            S(f"s_branch {Ly}")
            S.label(Lx)
            S("v_and_b32 v9, 31, v0")
            S("s_lshl_b32 s57, s55, 5")
            S("v_add_u32 v9, s57, v9")
            S("v_lshlrev_b32 v9, 10, v9")
            S("v_lshl_add_u32 v9, v8, 3, v9")
            S("s_lshl_b32 s57, s53, 7")
            S("s_lshl_b32 s58, s51, 6")
            S("s_add_u32 s57, s57, s58")
            for q in range(4):
                S(f"buffer_load_dwordx2 v[{16+2*q}:{17+2*q}], v9, s[40:43], s57 offen offset:{q*16}")
            S.label(Ly)
            S.force_wait(vm=True)
        S.wait(rt)
        for q in range(4):
            for d in range(2):
                S(f"v_lshlrev_b32 v{AO+4*q+2*d}, 16, v{16+2*q+d}")
                S(f"v_and_b32 v{AO+4*q+2*d+1}, 0xffff0000, v{16+2*q+d}")
        mask_fn()
        expect()
        poll(S,3,7,28,68,64,69,66)
        S(f"s_mul_i32 s78, s55, {act_tile_bytes}")
        S(f"s_add_u32 s78, s78, s{s_act}")
        S(f"s_mul_i32 s57, s51, {khalf_bytes}")
        S("s_add_u32 s78, s78, s57")
        bt={}
        def ld(s):
            def f(S):
                if s%4==0 and s>0: S("s_add_u32 s78, s78, 4096")
                r=128+4*(s%32)
                bt[s]=S(f"buffer_load_dwordx4 v[{r}:{r+3}], v1, s[28:31], s78 offen offset:{(s%4)*1024} sc1")
            return f
        PF2=12
        for s in range(min(PF2,nsteps)): ld(s)(S)
        S.barrier(bars[0])
        steps=[]
        for s in range(nsteps):
            for t,(acc,vr) in enumerate(((AO,5),(AT,6))):
                c = accs(acc) if (t==0 or s>0) else '0'
                d=dict(acc=acc,c=c,b=128+4*(s%32),btok=(lambda s=s: bt[s]))
                off,pre,bar=items_fn(s,t)
                d['a']=('tr',vr,off)
                if pre: d['pre_reads']=pre
                if t==1:
                    if s+PF2<nsteps:
                        d['post']=ld(s+PF2); d['postcost']=1.5 if (s+PF2)%4==0 else 1
                    if bar: d['after']=(lambda S,bar=bar: S.barrier(bar))
                steps.append(d)
        mfma_stream(S,steps,[])
        S("s_lshl_b32 s57, s20, 12")
        S(f"s_add_u32 s57, s57, {SCR}")
        S("v_add_u32 v8, s57, v1")
        S("s_xor_b32 s58, s57, 0x2000")
        S("v_add_u32 v9, s58, v1")
        for q in range(4): S(f"ds_write_b128 v8, v[{AT+4*q}:{AT+4*q+3}] offset:{q*1024}")
        S.wait(lg_all=True)
        S.barrier(bars[-1])
        tk=[S(f"ds_read_b128 v[{96+4*q}:{99+4*q}], v9 offset:{q*1024}") for q in range(4)]
        for q in range(4):
            S.wait(tk[q])
            S(f"v_pk_add_f32 v[{AO+4*q}:{AO+4*q+1}], v[{AO+4*q}:{AO+4*q+1}], v[{96+4*q}:{97+4*q}]")
            S(f"v_pk_add_f32 v[{AO+4*q+2}:{AO+4*q+3}], v[{AO+4*q+2}:{AO+4*q+3}], v[{96+4*q+2}:{97+4*q+2}]")
        for i in range(8): S(f"v_cvt_pk_bf16_f32 v{16+i}, v{AO+2*i}, v{AO+2*i+1}")
        S(f"v_pk_mul_f32 v[96:97], v[{AO}:{AO+1}], v[{AO}:{AO+1}]")
        S(f"v_pk_add_f32 v[98:99], v[{AO}:{AO+1}], v[{AO+2}:{AO+3}]")
        S(f"v_pk_fma_f32 v[96:97], v[{AO+2}:{AO+3}], v[{AO+2}:{AO+3}], v[96:97]")
        for i in range(2,8):
            S(f"v_pk_add_f32 v[98:99], v[98:99], v[{AO+2*i}:{AO+2*i+1}]")
            S(f"v_pk_fma_f32 v[96:97], v[{AO+2*i}:{AO+2*i+1}], v[{AO+2*i}:{AO+2*i+1}], v[96:97]")
        for b in (16,20):
            S(f"v_permlane32_swap_b32 v{b}, v{b+2}")
            S(f"v_permlane32_swap_b32 v{b+1}, v{b+3}")
        S("v_add_f32 v98, v98, v99")
        S("v_add_f32 v96, v96, v97")
        S("v_permlane32_swap_b32 v98, v96")
        S("v_add_f32 v98, v98, v96")
        S("v_and_b32 v10, 31, v0")
        S("v_lshlrev_b32 v10, 4, v10")
        S("v_lshrrev_b32 v11, 5, v0")
        S("v_lshl_add_u32 v10, v11, 2, v10")
        S("s_lshl_b32 s58, s53, 9")
        S("s_lshl_b32 s59, s51, 3")
        S("s_add_u32 s81, s58, s59")
        return
    def out_tl(s_out,s_sout):
        S(f"s_add_u32 s57, s80, s{s_out}")
        st2("v[16:19]",1,57,0); st2("v[20:23]",1,57,1024)
        S("s_lshl_b32 s58, s55, 12")
        S("s_add_u32 s58, s58, s81")
        S(f"s_add_u32 s58, s58, s{s_sout}")
        st2("v98",10,58,0,'')

    def mask2():
        S("s_lshl_b32 s57, s52, 1")
        S("s_add_u32 s57, s57, s50")
        S("s_mov_b32 s58, 0x11111111")
        S("s_lshl_b32 s58, s58, s57")
        S("s_cmp_eq_u32 s51, 0")
        S("s_cselect_b32 s64, s58, 0")
        S("s_cselect_b32 s65, 0, s58")
    S("s_mul_i32 s82, s51, 3")
    S("s_lshl_b32 s82, s82, 14")
    S("s_lshl_b32 s83, s51, 14")
    def items2(s,t):
        pre=None
        if s==0: pre = setaddr(5,6,extra_s=82) if t==0 else setaddr(6,7,extra_s=83)
        return s*1024,pre,None
    gemm2("P2",16,72,TILE,16384,70,mask2,items2,["Bd","Be"],73,74,False)
    out_tl(73,74)
    bump(); set_flag()
    if cfg.stop_after==2:
        S("s_branch L_fin"); return S

    S("s_mov_b32 s58, 0x55555555")
    S("s_lshl_b32 s58, s58, s50")
    S("s_cmp_eq_u32 s51, 0")
    S("s_cselect_b32 s64, s58, 0")
    S("s_cselect_b32 s65, 0, s58")
    expect()
    poll(S,3,7,28,68,64,69,66)
    S("s_lshl_b32 s78, s54, 15")
    S("s_add_u32 s78, s78, s73")
    S("s_lshl_b32 s79, s54, 12")
    S("s_add_u32 s79, s79, s74")
    btok={}
    for s in range(PF): ldfrag(s)(S)
    S("v_and_b32 v7, 31, v0")
    S("v_lshlrev_b32 v7, 4, v7")
    for u in range(8):
        sttok=S(f"buffer_load_dwordx4 v[{96+4*u}:{99+4*u}], v7, s[28:31], s79 offen offset:{u*512} sc1")
    S("s_lshl_b32 s57, s22, 3")
    S("s_mul_hi_u32 s57, s57, 0x55555556")
    S("s_lshl_b32 s57, s57, 11")
    S(f"s_mul_i32 s84, s54, {HTILE}")
    S("s_add_u32 s84, s84, s57")
    S("s_add_u32 s84, s84, s75")
    S.barrier("Bf")
    AG=[64,96]; AU=[80,112]
    gA,gB,gI=8,9,10
    steps=[]; fill=[]
    fill.append((8,0,lambda S: S.wait(sttok)))
    for c,t in stats_to_frag(S, st_regs, (11,12,13,14), 28, gelu=(gA,gB,gI)): fill.append((8,c,t))
    S("v_lshlrev_b32 v15, 3, v0")
    S(f"v_add_u32 v15, {CST}, v15")
    cst={}
    def rdcs(key,reg,tile):
        def f(S): cst[key]=S(f"ds_read_b64 v[{reg}:{reg+1}], v15 offset:{tile*512}")
        return f
    def epi_g(p, ms):
        pass
    def epilogue(p, ms_g, ms_u):
        ag,au=AG[p%2],AU[p%2]
        T=[11,12,13,14]
        for q in range(4):
            idx=[4*q+i for i in range(4)]
            for i,k in enumerate(idx): fill.append((ms_g,1,f"v_mul_f32 v{T[i]}, v{ag+k}, v{ag+k}"))
            for i,k in enumerate(idx): fill.append((ms_g,1,f"v_fma_f32 v{T[i]}, v{T[i]}, v{gB}, v{gA}"))
            for i,k in enumerate(idx): fill.append((ms_g,1,f"v_mul_f32 v{T[i]}, v{T[i]}, v{ag+k}"))
            for i,k in enumerate(idx): fill.append((ms_g,2,f"v_exp_f32 v{T[i]}, v{T[i]}"))
            for i,k in enumerate(idx): fill.append((ms_g,1,f"v_fma_f32 v{T[i]}, v{T[i]}, v{gI}, v{gI}"))
            for i,k in enumerate(idx): fill.append((ms_g,2,f"v_rcp_f32 v{T[i]}, v{T[i]}"))
            for i,k in enumerate(idx): fill.append((ms_g,1,f"v_mul_f32 v{ag+k}, v{ag+k}, v{T[i]}"))
        for k in range(16): fill.append((ms_u,1,f"v_mul_f32 v{au+k}, v{au+k}, v{ag+k}"))
        for i in range(8): fill.append((ms_u,1,f"v_cvt_pk_bf16_f32 v{16+i}, v{au+2*i}, v{au+2*i+1}"))
        for b in (16,20):
            fill.append((ms_u,2,f"v_permlane32_swap_b32 v{b}, v{b+2}"))
            fill.append((ms_u,2,f"v_permlane32_swap_b32 v{b+1}, v{b+3}"))
        def stf(S,p=p):
            S(f"s_add_u32 s57, s84, {p*2048}")
            st2("v[16:19]",1,57,0); st2("v[20:23]",1,57,1024)
        fill.append((ms_u,4,stf))
    gbars=["G1","G2","G3","G4","G5","G6"]
    for p in range(2):
        for s in range(32):
            for t,(acc,vr) in enumerate(((AG[p%2],5),(AU[p%2],6))):
                d=dict(acc=acc,c=('0' if s==0 else accs(acc)),a=('tr',vr,(s%16)*1024),b=128+4*s)
                if p==0: d['btok']=(lambda s=s: btok[s])
                if s%16==0: d['pre_reads']=setaddr(vr,10+4*p+2*(s//16)+t)
                if p==0 and t==1 and s+PF<32:
                    d['post']=ldfrag(s+PF); d['postcost']=1.5 if (s+PF)%4==0 else 1
                if t==1 and s%16==15:
                    bar=gbars[2*p+s//16]
                    if s==31:
                        def aft(S,bar=bar,p=p):
                            S.barrier(bar)
                            rdcs(('g',p),32,3+2*p)(S); rdcs(('u',p),36,4+2*p)(S)
                        d['after']=aft
                    else:
                        d['after']=(lambda S,bar=bar: S.barrier(bar))
                steps.append(d)
        steps.append(('corr',p))
    p=2
    for t,(acc,it0) in enumerate(((AG[0],18),(AU[0],20))):
        for s in range(32):
            d=dict(acc=acc,c=('0' if s==0 else accs(acc)),a=('tr',5+t,(s%16)*1024),b=128+4*s)
            if s%16==0: d['pre_reads']=setaddr(5+t,it0+s//16)
            if s==31:
                bar=gbars[4+t]
                def aft(S,bar=bar,t=t):
                    S.barrier(bar)
                    rdcs(('g2' if t==0 else 'u2'),32 if t==0 else 36,7+t)(S)
                d['after']=aft
            steps.append(d)
        steps.append(('corr2',t))
    out=[]; pend=[]
    for st in steps:
        if isinstance(st,tuple):
            pend.append([st,3]); continue
        out.append(st)
        for pe in pend: pe[1]-=1
        while pend and pend[0][1]<=0:
            kind,idx=pend.pop(0)[0]
            if kind=='corr':
                out.append(dict(acc=AG[idx%2],c=accs(AG[idx%2]),a=('reg',32,lambda idx=idx: cst[('g',idx)]),b=28,tag=('cg',idx)))
                out.append(dict(acc=AU[idx%2],c=accs(AU[idx%2]),a=('reg',36,lambda idx=idx: cst[('u',idx)]),b=28,tag=('cu',idx)))
            else:
                out.append(dict(acc=AG[0],c=accs(AG[0]),a=('reg',32,lambda: cst['g2']),b=28,tag=('cg',2)))
    out.append(dict(acc=AU[0],c=accs(AU[0]),a=('reg',36,lambda: cst['u2']),b=28,tag=('cu',2)))
    steps=out
    pos={st['tag']:i for i,st in enumerate(steps) if 'tag' in st}
    first_g2=[i for i,st in enumerate(steps) if st.get('acc')==AG[0] and st['c']=='0'][1]
    for p in range(3):
        epilogue(p,pos[('cg',p)]+4,pos[('cu',p)]+4)
        if p==0: steps[first_g2]['need_fill']=len(fill)
    mfma_stream(S,steps,fill)
    bump(); set_flag()
    if cfg.stop_after==3:
        S("s_branch L_fin"); return S

    def mask4():
        S("s_lshl_b32 s57, s52, 1")
        S("s_add_u32 s57, s57, s50")
        S("s_mov_b32 s58, 0x11111111")
        S("s_lshl_b32 s58, s58, s57")
        S("s_lshl_b32 s59, 1, s57")
        S("s_cmp_eq_u32 s51, 0")
        S("s_cselect_b32 s64, s58, 0")
        S("s_cselect_b32 s65, s59, s58")
    S("s_lshl_b32 s85, s51, 13")
    S("s_xor_b32 s86, s85, 0x2000")
    S("s_mul_i32 s87, s51, 9216")
    S("s_mul_i32 s88, s51, 3072")
    S("s_sub_u32 s88, 3072, s88")
    S("s_mul_i32 s57, s51, 6144")
    S("s_add_u32 s88, s88, s57")
    kb=["K1","K2","K3","K4","K5"]
    def items4(s,t):
        g=s//8; sl=s%8
        pre=None
        if sl==0:
            if g<5: pre=setaddr(5+t,22+2*g,extra_s=83,add_s=(85 if t==0 else 86))
            else: pre=setaddr(5+t,32,add_s=(87 if t==0 else 88))
        bar = kb[g] if (sl==7 and g<5) else None
        return sl*1024,pre,bar
    gemm2("P4",43,75,HTILE,43*1024,73,mask4,items4,["Bh","K6"],None,None,True)
    Lfin=S.newlabel('Lfinal'); Ldone=S.newlabel('Lp4done')
    S("s_cmp_eq_u32 s48, 1")
    S(f"s_cbranch_scc1 {Lfin}")
    S(f"s_mov_b32 s76, {XB[2]}")
    S(f"s_mov_b32 s77, {STATS+2*0x40000}")
    out_tl(76,77)
    Lnh=S.newlabel('Lnohalo')
    S("s_and_b32 s57, s52, s50")
    S("s_cmp_eq_u32 s57, 0")
    S(f"s_cbranch_scc1 {Lnh}")
    S("s_cmp_eq_u32 s21, 15")
    S(f"s_cbranch_scc1 {Lnh}")
    S("s_add_u32 s58, s21, 17")
    S("s_lshl_b32 s59, s58, 15")
    S("s_lshl_b32 s57, s53, 12")
    S("s_add_u32 s59, s59, s57")
    S("s_lshl_b32 s57, s51, 11")
    S("s_add_u32 s59, s59, s57")
    S(f"s_add_u32 s59, s59, {HALOX}")
    S("buffer_store_dwordx4 v[16:19], v1, s[28:31], s59 offen sc1")
    S("buffer_store_dwordx4 v[20:23], v1, s[28:31], s59 offen offset:1024 sc1")
    S("s_lshl_b32 s59, s58, 12")
    S("s_add_u32 s59, s59, s81")
    S(f"s_add_u32 s59, s59, {HSTATS}")
    S("buffer_store_dword v98, v10, s[28:31], s59 offen sc1")
    S.force_wait(vm=True)
    S(f"v_add_u32 v7, {HFLAGS-FLAGS+256}, v4")
    S("s_add_u32 s57, s24, 1")
    S("v_mov_b32 v8, s57")
    S("s_mov_b64 exec, 1")
    S("buffer_store_dword v8, v7, s[28:31], 0 offen sc1")
    S("s_mov_b64 exec, -1")
    S.label(Lnh)
    bump(); set_flag()
    if cfg.stop_after==4:
        S("s_branch L_fin"); return S
    S("s_mov_b32 s48, 1")
    S("s_branch L_layer")
    S.label(Lfin)
    S("s_nop 1")
    S("v_and_b32 v7, 31, v0")
    S("s_lshl_b32 s57, s55, 5")
    S("v_add_u32 v7, s57, v7")
    S("v_lshlrev_b32 v7, 10, v7")
    S("v_lshrrev_b32 v8, 5, v0")
    S("v_lshl_add_u32 v7, v8, 4, v7")
    S("s_lshl_b32 s57, s53, 7")
    S("s_lshl_b32 s58, s51, 6")
    S("s_add_u32 s57, s57, s58")
    S("buffer_store_dwordx4 v[16:19], v7, s[44:47], s57 offen")
    S("buffer_store_dwordx4 v[20:23], v7, s[44:47], s57 offen offset:32")
    S("s_or_b32 s57, s22, s20")
    S("s_cmp_lg_u32 s57, 0")
    S("s_cbranch_scc1 L_fin")
    S("s_lshl_b32 s57, s21, 7")
    S(f"s_add_u32 s57, s57, {EPOCH}")
    S("v_mov_b32 v7, s57")
    S("s_add_u32 s58, s23, 256")
    S("v_mov_b32 v8, s58")
    S("s_mov_b64 exec, 1")
    S("buffer_store_dword v8, v7, s[28:31], 0 offen")
    S("s_branch L_fin")
    return S

def gen_H():
    S=Stream('H')
    S.label("L_helper")
    S("s_nop 4")
    srd(S,32,6,7,512*1536*2)
    srd(S,36,8,9,512*512*2)
    srd(S,40,12,13,512*1376*2)
    srd(S,44,14,15,512*1376*2)
    srd(S,48,10,11,1376*512*2)
    S("s_sub_u32 s52, s20, 4")
    S("s_lshr_b32 s53, s22, 3")
    S("s_and_b32 s54, s22, 7")
    S("v_lshrrev_b32 v2, 2, v0")
    S("v_and_b32 v3, 3, v0")
    S("v_lshlrev_b32 v3, 4, v3")
    S("v_mul_u32_u24 v4, 3072, v2"); S("v_add_u32 v4, v4, v3")
    S("v_lshlrev_b32 v5, 10, v2");   S("v_add_u32 v5, v5, v3")
    S("v_mul_u32_u24 v6, 2752, v2"); S("v_add_u32 v6, v6, v3")
    S("s_lshl_b32 s55, s22, 6")
    S("s_lshl_b32 s56, s54, 7")
    S("s_lshl_b32 s57, s22, 3")
    S("s_mul_hi_u32 s57, s57, 0x55555556")
    S("s_lshl_b32 s57, s57, 6")
    S("s_mul_i32 s58, s52, 64*3072")
    S("s_mul_i32 s59, s52, 64*1024")
    S("s_mul_i32 s60, s52, 64*2752")
    S("s_lshl_b32 s61, s52, 12")
    itok={}
    def dma(n):
        L,i=divmod(n,NITEMS)
        base=(n*SLOT)&0x1ffff
        if i<6:
            nm=['k','v','k','v','q','q'][i]; half=[0,0,1,1,0,1][i]
            col={'q':0,'k':1024,'v':2048}[nm]
            spec=(32,4,3072,55,col,256*half,58)
        elif i<10:
            ft=(i-6)%2; half=(i-6)//2
            spec=(36,5,1024,56,64*ft,256*half,59)
        elif i<22:
            tbl={10:('g',0,0),11:('u',0,0),12:('g',0,1),13:('u',0,1),14:('g',1,0),15:('u',1,0),16:('g',1,1),17:('u',1,1),
                 18:('g',2,0),19:('g',2,1),20:('u',2,0),21:('u',2,1)}
            m,p,half=tbl[i]
            spec=(40 if m=='g' else 44,6,2752,57,64*p,256*half,60)
        else:
            spec=None
        tok=None
        if spec:
            sr,vl,pitch,scol,colimm,row0,swave=spec
            S(f"s_add_u32 s62, s{scol}, s{swave}")
            S(f"s_add_u32 s62, s62, {colimm+row0*pitch}")
            S(f"s_add_u32 m0, s61, {base}")
            for c in range(4):
                if c>0:
                    S(f"s_add_u32 s62, s62, {16*pitch}")
                    S(f"s_add_u32 m0, m0, 1024")
                tok=S(f"buffer_load_dwordx4 v{vl}, s[{sr}:{sr+3}], s62 offen lds")
        elif i<32:
            g=(i-22)//2; kh=(i-22)%2
            row0=688*kh+128*g
            S("s_lshr_b32 s63, s52, 1"); S("s_lshl_b32 s63, s63, 6")
            S("s_and_b32 s62, s52, 1"); S("s_lshl_b32 s62, s62, 16")
            S("s_add_u32 s62, s62, s63")
            S("s_add_u32 s62, s62, s56")
            S(f"s_add_u32 s62, s62, {row0*1024}")
            S(f"s_add_u32 m0, s61, {base}")
            for c in range(4):
                if c>0:
                    S(f"s_add_u32 s62, s62, {16*1024}")
                    S(f"s_add_u32 m0, m0, 1024")
                tok=S(f"buffer_load_dwordx4 v5, s[48:51], s62 offen lds")
        else:
            S("s_lshr_b32 s63, s52, 1"); S(f"s_mul_i32 s63, s63, {688*1024}")
            S("s_and_b32 s62, s52, 1"); S("s_lshl_b32 s62, s62, 6")
            S("s_add_u32 s62, s62, s63")
            S("s_add_u32 s62, s62, s56")
            S(f"s_add_u32 s62, s62, {640*1024}")
            S("s_mul_i32 s63, s52, 3072")
            S(f"s_add_u32 m0, s63, {base}")
            for c in range(3):
                if c>0:
                    S(f"s_add_u32 s62, s62, {16*1024}")
                    S(f"s_add_u32 m0, m0, 1024")
                tok=S(f"buffer_load_dwordx4 v5, s[48:51], s62 offen lds")
        itok[n]=tok
    nlayers = 2 if cfg.stop_after>4 else 1
    last_item = NITEMS*nlayers-1
    nxt=[0]
    def issue_upto(n):
        while nxt[0]<=min(n,last_item):
            dma(nxt[0]); nxt[0]+=1
    issue_upto(7)
    if cfg.stop_after==0:
        S.force_wait(vm=True); S("s_branch L_fin"); return S
    S("v_lshrrev_b32 v7, 4, v0"); S("v_lshlrev_b32 v7, 9, v7")
    S("v_bfe_u32 v8, v0, 2, 2"); S("v_lshl_add_u32 v7, v8, 6, v7")
    S("v_and_b32 v8, 3, v0"); S("v_lshl_add_u32 v7, v8, 3, v7")
    S("s_and_b32 s64, s52, 1")
    S("s_lshl_b32 s65, s64, 5")
    S("v_add_u32 v7, s65, v7")
    for r in range(12,16): S(f"v_mov_b32 v{r}, 0x3f803f80")
    S("v_mov_b32 v8, 0"); S("v_mov_b32 v9, 0"); S(f"v_mov_b32 v10, {ZERO8}")
    S("ds_write_b64 v10, v[8:9]")
    S("v_lshrrev_b32 v11, 4, v0"); S("v_lshlrev_b32 v11, 9, v11")
    S("v_and_b32 v8, 15, v0"); S("v_lshl_add_u32 v11, v8, 4, v11"); S("v_add_u32 v11, 256, v11")
    S("v_and_b32 v16, 15, v0"); S("v_lshlrev_b32 v16, 4, v16"); S("v_add_u32 v16, 256, v16")
    S("s_lshr_b32 s66, s52, 1")
    S("s_lshl_b32 s67, s66, 9")
    S("s_lshl_b32 s68, s64, 7")
    S("s_add_u32 s67, s67, s68")
    S(f"s_add_u32 s67, s67, {CST}")
    S("v_and_b32 v17, 15, v0"); S("v_lshlrev_b32 v17, 3, v17")
    S("v_bfe_u32 v8, v0, 4, 1"); S("v_lshl_add_u32 v17, v8, 8, v17")
    S("v_add_u32 v17, s67, v17")
    S(f"v_mov_b32 v8, {ZERO8}")
    S("v_cmp_gt_u32 vcc, 32, v0")
    S("v_cndmask_b32 v17, v8, v17, vcc")
    for r in (22,23,26,27): S(f"v_mov_b32 v{r}, 0")
    S("v_and_b32 v18, 15, v0"); S("v_lshlrev_b32 v18, 4, v18")
    S("v_bfe_u32 v8, v0, 4, 1")
    S("v_lshrrev_b32 v9, 5, v0")
    S("v_mul_u32_u24 v19, 2304, v8"); S("v_add_u32 v19, v19, v18"); S("v_lshl_add_u32 v19, v9, 3, v19")
    S("s_mul_i32 s68, s64, 4608"); S(f"s_add_u32 s68, s68, {KBUF}")
    S("v_add_u32 v19, s68, v19")
    S("v_mul_u32_u24 v28, 4608, v8"); S("v_add_u32 v28, v28, v18")
    S("v_mul_u32_u24 v9, 2304, v9"); S("v_add_u32 v28, v28, v9")
    S("s_mul_i32 s68, s64, 9216"); S(f"s_add_u32 s68, s68, {VBUF}")
    S("v_add_u32 v28, s68, v28")
    S.items.append(Ins("s_waitcnt lgkmcnt(0)")); S.lg_done=S.lg_issued

    def cs_finish(dreg, tile_s_expr_setup, half):
        S(f"v_cvt_pk_bf16_f32 v30, v{dreg}, v{dreg}")
        S(f"v_lshlrev_b32 v30, 16, v30")
        S(f"v_sub_f32 v31, v{dreg}, v30")
        S(f"v_cvt_pk_bf16_f32 v32, v{dreg}, v31")
        S(f"v_and_b32 v30, 0xffff0000, v32")
        S(f"v_sub_f32 v31, v31, v30")
        S(f"v_cvt_pk_bf16_f32 v33, v31, 0")
        S("v_and_b32 v30, 15, v0"); S("v_lshlrev_b32 v30, 3, v30")
        S("v_add_u32 v30, s70, v30")
        S("s_mov_b64 exec, 0xffff")
        S("ds_write_b64 v30, v[32:33]")
        S("s_mov_b64 exec, -1")
    def tr16(dst, vaddr, off):
        S(f"ds_read_b64_tr_b16 v[{dst}:{dst+1}], v{vaddr} offset:{off}")
        return S(f"ds_read_b64_tr_b16 v[{dst+2}:{dst+3}], v{vaddr} offset:{off+256}")
    def cs_item(nA,nB,tileA,halfA,tileB,halfB):
        bA=(nA*SLOT)&0x1ffff; bB=(nB*SLOT)&0x1ffff
        S("s_cmp_lt_u32 s52, 2")
        csel(S,69,bA,bB)
        csel(S,70,CST+tileA*512+halfA*256,CST+tileB*512+halfB*256)
        S("s_lshl_b32 s71, s64, 7")
        S("s_add_u32 s70, s70, s71")
        S("v_add_u32 v29, s69, v7")
        tk=[]
        for sp in range(4): tk.append(tr16(36+4*sp,29,sp*2048))
        for sp in range(8):
            S.wait(tk[sp])
            r=36+4*(sp%4)
            S(f"v_mfma_f32_16x16x32_bf16 v[52:55], v[12:15], v[{r}:{r+3}], {'0' if sp==0 else 'v[52:55]'}")
            if sp+4<8: tk.append(tr16(r,29,(sp+4)*2048))
        cs_finish(52,None,None)

    for L in range(nlayers):
        n0=NITEMS*L
        def pub(*items):
            toks=[itok[n0+i] for i in items if (n0+i) in itok]
            S.wait(*toks)
        def bar(name, publish=(), issue=None, lg=True):
            pub(*publish)
            if lg: S.wait(lg_all=True)
            S.barrier(name)
            if issue is not None: issue_upto(n0+issue)
        if L==0:
            mov64(S,72,0x1111111111111111)
            S("s_lshl_b32 s74, s21, 8"); S(f"s_add_u32 s74, s74, {FLAGS}")
            S("s_add_u32 s75, s23, 1")
            hx=HALOX; hs=HSTATS
            S("s_lshl_b32 s76, s21, 15"); S(f"s_add_u32 s76, s76, {hx}")
            S("s_lshl_b32 s77, s21, 12"); S(f"s_add_u32 s77, s77, {hs}")
        else:
            S("s_mov_b32 s72, 0"); S("s_mov_b32 s73, 0xaaaaaaaa")
            S("s_lshl_b32 s74, s21, 8"); S(f"s_add_u32 s74, s74, {HFLAGS}")
            S("s_add_u32 s75, s23, 1")
            S("s_add_u32 s78, s21, 16")
            S("s_cmp_eq_u32 s21, 0")
            S("s_cselect_b32 s78, 0, s78")
            S("s_cselect_b32 s72, 0, s72"); S("s_cselect_b32 s73, 0, s73")
            S("s_lshl_b32 s76, s78, 15"); S(f"s_add_u32 s76, s76, {HALOX}")
            S("s_lshl_b32 s77, s78, 12"); S(f"s_add_u32 s77, s77, {HSTATS}")
        S("v_lshlrev_b32 v34, 2, v0"); S("v_add_u32 v34, s74, v34")
        poll(S,34,35,28,75,72,79,80)
        S.vm_done=S.vm_issued
        ht={}
        for sp in range(16):
            if sp%2==0 and sp>0: S("s_add_u32 s76, s76, 4096")
            ht[sp]=S(f"buffer_load_dwordx4 v[{128+4*sp}:{131+4*sp}], v11, s[28:31], s76 offen offset:{(sp%2)*2048} sc1")
        stt=None
        for u in range(8):
            stt=S(f"buffer_load_dwordx4 v[{96+4*u}:{99+4*u}], v16, s[28:31], s77 offen offset:{u*512} sc1")
        bar("Ba",publish=(0,1,2,3,4,5),lg=True)
        lo0=((n0+0)*SLOT)&0x1ffff; lo1=((n0+1)*SLOT)&0x1ffff; hi0=((n0+2)*SLOT)&0x1ffff; hi1=((n0+3)*SLOT)&0x1ffff
        S("s_cmp_lt_u32 s52, 2")
        csel(S,69,lo0,lo1)
        csel(S,71,hi0,hi1)
        S("v_add_u32 v29, s69, v7")
        S("v_add_u32 v35, s71, v7")
        tk=[]
        def rd(sp):
            va=29 if sp<8 else 35
            return tr16(36+4*(sp%4),va,(sp%8)*2048)
        for sp in range(4): tk.append(rd(sp))
        for sp in range(16):
            S.wait(tk[sp],ht[sp])
            r=36+4*(sp%4)
            S(f"v_mfma_f32_16x16x32_bf16 v[56:59], v[{r}:{r+3}], v[{128+4*sp}:{131+4*sp}], {'0' if sp==0 else 'v[56:59]'}")
            if L==0:
                a=52 if sp<8 else 60
                S(f"v_mfma_f32_16x16x32_bf16 v[{a}:{a+3}], v[12:15], v[{r}:{r+3}], {'0' if sp%8==0 else 'v[%d:%d]'%(a,a+3)}")
            if sp+4<16: tk.append(rd(sp+4))
        if L==0:
            S("s_lshl_b32 s70, s66, 9"); S("s_lshl_b32 s71, s64, 7"); S("s_add_u32 s70, s70, s71"); S(f"s_add_u32 s70, s70, {CST}")
            cs_finish(52,None,None)
            S("s_add_u32 s70, s70, 256")
            cs_finish(60,None,None)
            S.wait(lg_all=True)
        S.wait(stt)
        for c,t in stats_to_frag(S, list(range(96,128)), (30,31,32,33), 20, out_rstd=34): S(t)
        ct=S("ds_read_b64 v[24:25], v17")
        S.wait(ct)
        S("v_mfma_f32_16x16x32_bf16 v[56:59], v[24:27], v[20:23], v[56:59]")
        for i in range(4): S(f"v_mul_f32 v{56+i}, v{56+i}, v34")
        Lv=S.newlabel('Lhv'); Ld=S.newlabel('Lhd')
        S("s_cmp_ge_u32 s52, 2")
        S(f"s_cbranch_scc1 {Lv}")
        S("v_cvt_pk_bf16_f32 v30, v56, v57")
        S("v_cvt_pk_bf16_f32 v31, v58, v59")
        S("ds_write_b64 v19, v[30:31]")
        S(f"s_branch {Ld}")
        S.label(Lv)
        S("ds_write_b128 v28, v[56:59]")
        S.label(Ld)
        S.items.append(Ins("s_waitcnt lgkmcnt(0)")); S.lg_done=S.lg_issued
        if L==0:
            cs_item(n0+4,n0+5,2,0,2,1)
        bar("Bb",issue=11)
        bar("Bc",issue=13)
        if cfg.stop_after==1+4*L:
            S.force_wait(vm=True); S("s_branch L_fin"); return S
        bar("Bd",publish=(6,7,8,9))
        bar("Be",issue=17)
        if cfg.stop_after==2+4*L:
            S.force_wait(vm=True); S("s_branch L_fin"); return S
        bar("Bf",publish=(10,11,12,13))
        if L==0: cs_item(n0+10,n0+11,3,0,4,0)
        bar("G1",publish=(14,15),issue=19)
        if L==0: cs_item(n0+12,n0+13,3,1,4,1)
        bar("G2",publish=(16,17),issue=21)
        if L==0: cs_item(n0+14,n0+15,5,0,6,0)
        bar("G3",publish=(18,19),issue=23)
        if L==0: cs_item(n0+16,n0+17,5,1,6,1)
        bar("G4",publish=(20,21),issue=25)
        if L==0: cs_item(n0+18,n0+19,7,0,7,1)
        bar("G5",issue=27)
        if L==0: cs_item(n0+20,n0+21,8,0,8,1)
        bar("G6",issue=29)
        if cfg.stop_after==3+4*L:
            S.force_wait(vm=True); S("s_branch L_fin"); return S
        bar("Bh",publish=(22,23,24,25))
        bar("K1",publish=(26,27),issue=31)
        bar("K2",publish=(28,29),issue=33)
        bar("K3",publish=(30,31),issue=35)
        bar("K4",publish=(32,),issue=37)
        bar("K5",issue=39)
        bar("K6",issue=40)
        if cfg.stop_after==4+4*L:
            S.force_wait(vm=True); S("s_branch L_fin"); return S
    S("s_branch L_fin")
    return S

def build():
    P=gen_prologue(); C=gen_C(); H=gen_H()
    nl = 2 if cfg.stop_after>4 else 1
    cb=C.barriers; hb=H.barriers
    if cfg.stop_after>=4:
        exp=cb*nl
        if cfg.stop_after in (5,6,7):
            pass
        else:
            assert hb==exp, (hb,exp)
    else:
        assert hb==cb, (hb,cb)
    hdr=open(os.path.join(os.path.dirname(os.path.abspath(__file__)),'header.txt')).read().rstrip('\n')
    txt=hdr+f"\n; @launch grid=(256,1,1) block=(512,1,1) lds={LDS_BYTES}\n"
    txt+='.amdgcn_target "amdgcn-amd-amdhsa--gfx950"\n.text\n'
    txt+=f".globl {KNAME}\n.p2align 8\n.type {KNAME},@function\n{KNAME}:\n"
    txt+=P.render()+"\n"+C.render()+"\n"+H.render()+"\n"
    txt+="L_fin:\n    s_waitcnt vmcnt(0) lgkmcnt(0)\nL_end:\n    s_endpgm\n"
    txt+=f""".section .rodata,"a"
.p2align 6
.amdhsa_kernel {KNAME}
  .amdhsa_next_free_vgpr 256
  .amdhsa_next_free_sgpr 96
  .amdhsa_accum_offset 256
  .amdhsa_group_segment_fixed_size 0
  .amdhsa_kernarg_size 80
  .amdhsa_user_sgpr_count 2
  .amdhsa_user_sgpr_kernarg_segment_ptr 1
  .amdhsa_system_sgpr_workgroup_id_x 1
.end_amdhsa_kernel
"""
    return txt

if __name__=="__main__":
    import argparse
    ap=argparse.ArgumentParser()
    ap.add_argument('--stop',type=int,default=99)
    ap.add_argument('-o',default='interleave_layers__sliding_local_dilated__geglu_ffn__prompt.s')
    a=ap.parse_args()
    cfg.stop_after=a.stop
    open(a.o,'w').write(build())
    print("wrote",a.o)
```

```python
import sys, os
sys.path.insert(0, os.path.dirname(os.path.abspath(__file__)))
from core import *

KNAME = "interleave_layers__sliding_local_dilated__geglu_ffn__prompt_kernel"

TEAMSZ=0x200000
FLAGS=0x0000; IDS=0x0100; HFLAGS=0x0200; EPOCH=0x0300; PF0=0x0400
STATS=0x1000
SBUF=0x4000
HSTATS=0x11000
HALOX=0x18000
XB=[0x30000,0x50000,0x70000,0x50000]
OB=[0xB0000,0xB0000]
HB=[0xF0000,0xF0000]
WS_USED=2*TEAMSZ
TILE=32768; HTILE=172*512
RING=0; SLOT=16384; NSLOT=8
SCR=131072
KBUF=SCR; VBUF=SCR+9216
CST=158720
MISC=163328
LDS_BYTES=163840
ZERO8=MISC+16

C_GELU=-2.0*0.7978845608028654*1.4426950408889634
def f2u(x):
    import struct
    return struct.unpack('<I',struct.pack('<f',x))[0]
def hexf(x): return "0x%08x"%f2u(x)

PROF=0x1A0000
class Cfg:
    prof = False
    prof_bar = True
    realtime = False
    stop_after = 99
    LA = 4
    NA = 6
    budget = 3.0
    timeout = 1<<18
    pv = 26
    retain = True
    codepf = True
    ntact = ''
    earlywarm = True
    startord = 'C'
    bd2 = 11
    warmP3 = True
    p0fast = False
    ba2 = 22
    prof_kv = False
    prof_h = False
    warmstart = True
    hpollA = 1
    bx = 44
    dbg_delay = 0
    dbg_nohp = False
    dbg_nohl = False
    hsleep = 8
    csleep = 0
    pretouch = True
    tlbwarm = True
    halowarm = True
    s0 = 'mid'
    nt = ''
    winE = 3
    win = 3
    winL = 16
    win0 = 4
    warm = True
    PF = 6
    PF2 = 6
    PF2MAX = 28

cfg=Cfg()

def srd(S, r, lo, hi, size):
    S(f"s_mov_b32 s{r}, s{lo}")
    S(f"s_mov_b32 s{r+1}, s{hi}")
    S(f"s_mov_b32 s{r+2}, {size}")
    S(f"s_mov_b32 s{r+3}, 0x00020000")

def csel(S, dst, a, b):
    S(f"s_mov_b32 s{dst}, {a}")
    S(f"s_cselect_b32 s{dst}, s{dst}, {b}")

def mov64(S, r, val):
    S(f"s_mov_b32 s{r}, 0x{val & 0xffffffff:08x}")
    S(f"s_mov_b32 s{r+1}, 0x{(val>>32) & 0xffffffff:08x}")

def stamp(S, idx, layer_s=None, pv=None, real=False):
    if not cfg.prof: return
    pv = cfg.pv if pv is None else pv
    S.smem("s_memrealtime s[90:91]" if (real or cfg.realtime) else "s_memtime s[90:91]")
    S.force_wait(lg=True)
    if layer_s is not None:
        S(f"s_lshl_b32 s93, s{layer_s}, 8")
        S(f"s_add_u32 s93, s93, s92")
        S(f"s_add_u32 s93, s93, {idx*4}")
    else:
        S(f"s_add_u32 s93, s92, {idx*4}")
    S("s_mov_b64 exec, 1")
    S(f"v_mov_b32 v{pv}, s90")
    S(f"v_mov_b32 v{pv+1}, s93")
    S(f"buffer_store_dword v{pv}, v{pv+1}, s[28:31], 0 offen")
    S("s_mov_b64 exec, -1")

def hstamp(S, idx):
    if not cfg.prof: return
    S.smem("s_memtime s[96:97]")
    S.force_wait(lg=True)
    S(f"s_add_u32 s99, s98, {idx*4}")
    S("s_mov_b64 exec, 1")
    S("v_mov_b32 v30, s96")
    S("v_mov_b32 v31, s99")
    S("buffer_store_dword v30, v31, s[28:31], 0 offen")
    S("s_mov_b64 exec, -1")

def poll(S, voff, vtmp, srdreg, s_expect, s_mask, s_cnt, s_tmp, span=16):
    L=S.newlabel('Lpoll'); D=S.newlabel('Lpdone')
    S(f"s_mov_b32 s{s_cnt}, 0")
    S.label(L)
    S(f"buffer_load_dword v{vtmp}, v{voff}, s[{srdreg}:{srdreg+3}], 0 offen sc1")
    S(f"s_add_u32 s{s_cnt}, s{s_cnt}, 1")
    S.force_wait(vm=True)
    S(f"v_subrev_u32 v{vtmp}, s{s_expect}, v{vtmp}")
    S(f"v_cmp_gt_u32 vcc, {span}, v{vtmp}")
    S(f"s_and_b64 s[{s_tmp}:{s_tmp+1}], vcc, s[{s_mask}:{s_mask+1}]")
    S(f"s_cmp_eq_u64 s[{s_tmp}:{s_tmp+1}], s[{s_mask}:{s_mask+1}]")
    S(f"s_cbranch_scc1 {D}")
    if cfg.csleep: S(f"s_sleep {cfg.csleep}")
    S(f"s_cmp_lt_u32 s{s_cnt}, {cfg.timeout}")
    S(f"s_cbranch_scc1 {L}")
    S.label(D)
    S("s_nop 1")

def stats_to_frag(S_emit, st, vt, nm, out_rstd=None, gelu=None, s_c=None):
    ops=[]
    a=lambda t,c=1: ops.append((c,t))
    idx_s=[st[2*i] for i in range(16)]; idx_q=[st[2*i+1] for i in range(16)]
    for arr in (idx_s, idx_q):
        n=16
        cur=list(arr)
        while len(cur)>1:
            nxt=[]
            for i in range(0,len(cur),2):
                a(f"v_add_f32 v{cur[i]}, v{cur[i]}, v{cur[i+1]}")
                nxt.append(cur[i])
            cur=nxt
    s=idx_s[0]; q=idx_q[0]
    t0,t1,t2,t3=vt
    a(f"v_mul_f32 v{t0}, {hexf(1/512)}, v{s}")
    a(f"v_mul_f32 v{t1}, {hexf(1/512)}, v{q}")
    a(f"v_fma_f32 v{t1}, -v{t0}, v{t0}, v{t1}")
    a(f"v_max_f32 v{t1}, 0, v{t1}")
    a(f"v_cvt_pk_bf16_f32 v{t2}, v{t0}, v{t0}")
    a(f"v_cvt_pk_bf16_f32 v{t1}, v{t1}, v{t1}")
    a(f"v_xor_b32 v{nm}, 0x80008000, v{t2}")
    a(f"v_and_b32 v{t1}, 0xffff0000, v{t1}")
    a(f"v_and_b32 v{nm+1}, 0xffff, v{nm}")
    a(f"v_add_f32 v{t1}, {hexf(1e-5)}, v{t1}")
    a(f"v_cvt_pk_bf16_f32 v{t1}, v{t1}, v{t1}")
    a(f"v_and_b32 v{t1}, 0xffff0000, v{t1}")
    a(f"v_sqrt_f32 v{t1}, v{t1}",2)
    a(f"v_cvt_pk_bf16_f32 v{t1}, v{t1}, v{t1}")
    a(f"v_and_b32 v{t1}, 0xffff0000, v{t1}")
    if gelu is None:
        a(f"v_rcp_f32 v{out_rstd}, v{t1}",2)
    else:
        A,B,inv=gelu
        a(f"v_rcp_f32 v{t0}, v{t1}",2)
        a(f"v_mul_f32 v{inv}, v{t1}, v{t1}")
        a(f"v_mul_f32 v{A}, {hexf(C_GELU)}, v{t0}")
        a(f"v_mul_f32 v{t2}, v{t0}, v{t0}")
        a(f"v_mul_f32 v{t2}, {hexf(0.044715)}, v{t2}")
        a(f"v_mul_f32 v{B}, v{A}, v{t2}")
    return ops

def mfma_stream(S, steps, fillers, ring_base=40):
    LA=cfg.LA; NA=cfg.NA
    n=len(steps)
    atok=[None]*n; areg=[None]*n
    ringi=[0]
    def issue_reads(i):
        st=steps[i]
        if st.get('pre_reads'): st['pre_reads'](S)
        a=st['a']
        if a[0]=='tr':
            r=ring_base+4*(ringi[0]%NA); ringi[0]+=1
            S(f"ds_read_b64_tr_b16 v[{r}:{r+1}], v{a[1]} offset:{a[2]}")
            atok[i]=S(f"ds_read_b64_tr_b16 v[{r+2}:{r+3}], v{a[1]} offset:{a[2]+st.get('a2',256)}")
            areg[i]=r
        else:
            areg[i]=a[1]
    fi=[0]
    def emit_fill(i, budget):
        used=0
        while fi[0]<len(fillers):
            ms,cost,f=fillers[fi[0]]
            if ms>i: break
            if used+cost>budget+1e-9 and used>0: break
            if used>=budget: break
            if callable(f): f(S)
            else: S(f)
            used+=cost; fi[0]+=1
    for i in range(min(LA,n)): issue_reads(i)
    for i in range(n):
        st=steps[i]
        if st.get('need_fill') is not None:
            while fi[0]<st['need_fill']:
                ms,cost,f=fillers[fi[0]]
                if callable(f): f(S)
                else: S(f)
                fi[0]+=1
        toks=[atok[i]]
        if st['a'][0]=='reg' and st['a'][2] is not None: toks.append(st['a'][2]())
        if st.get('btok'): toks.append(st['btok']())
        S.wait(*toks)
        shape='32x32x16' if st.get('shape',32)==32 else '16x16x32'
        nacc=16 if shape=='32x32x16' else 4
        S(f"v_mfma_f32_{shape}_bf16 v[{st['acc']}:{st['acc']+nacc-1}], v[{areg[i]}:{areg[i]+3}], v[{st['b']}:{st['b']+3}], {st['c']}")
        if i+LA<n: issue_reads(i+LA)
        b=cfg.budget
        if st.get('post'):
            st['post'](S); b-=st.get('postcost',1)
        if st.get('after'): st['after'](S); b-=1
        emit_fill(i,b)
    while fi[0]<len(fillers):
        ms,cost,f=fillers[fi[0]]
        if callable(f): f(S)
        else: S(f)
        fi[0]+=1

PBAR={'G1':32,'G2':34,'G3':36,'G4':38,'G5':40,'G6':42,'K1':44,'K2':46,'K3':48,'K4':50,'K5':52,'Bb':54,'Bx':56}
def pbar(S,name):
    if cfg.prof and cfg.prof_bar:
        stamp(S,PBAR[name],48); S.barrier(name); stamp(S,PBAR[name]+1,48)
    else:
        S.barrier(name)

def accs(base): return f"v[{base}:{base+15}]"

def gen_prologue():
    S=Stream('P')
    S("s_cmp_ge_u32 s2, 256")
    S("s_cbranch_scc1 L_end")
    S.smem("""s_load_dwordx4 s[4:7], s[0:1], 0
s_load_dwordx2 s[8:9], s[0:1], 16
s_load_dwordx4 s[12:15], s[0:1], 32
s_load_dwordx2 s[10:11], s[0:1], 48
s_load_dwordx2 s[16:17], s[0:1], 56
s_load_dwordx2 s[18:19], s[0:1], 72""")
    S("v_lshrrev_b32 v1, 6, v0")
    S("v_and_b32 v0, 63, v0")
    S("v_readfirstlane_b32 s20, v1")
    S("s_and_b32 s25, s2, 7")
    S("s_lshr_b32 s26, s2, 3")
    S("s_lshr_b32 s27, s26, 4")
    S("s_lshl_b32 s21, s25, 1")
    S("s_add_u32 s21, s21, s27")
    S("s_and_b32 s22, s26, 15")
    S("s_lshl_b32 s25, s21, 21")
    S.items.append(Ins("s_waitcnt lgkmcnt(0)"))
    S("s_add_u32 s18, s18, s25")
    S("s_addc_u32 s19, s19, 0")
    S(f"s_mov_b32 s25, {EPOCH}")
    S(f"s_mov_b32 s26, {EPOCH+TEAMSZ}")
    S.smem("""s_load_dword s23, s[18:19], s25
s_load_dword s24, s[18:19], s26""")
    srd(S,28,18,19,WS_USED)
    if cfg.prof:
        S('s_lshl_b32 s92, s22, 3'); S('s_add_u32 s92, s92, s20'); S('s_lshl_b32 s92, s92, 9'); S(f's_add_u32 s92, s92, {PROF}')
    S("v_lshlrev_b32 v1, 4, v0")
    if cfg.codepf:
        S("s_getpc_b64 s[96:97]")
        S.label("L_pc")
        S("s_lshr_b32 s25, s2, 3")
        S("s_lshl_b32 s25, s25, 3")
        S("s_add_u32 s25, s25, s20")
        S("s_and_b32 s25, s25, 63")
        S("s_lshl_b32 s25, s25, 10")
        S("v_add_u32 v2, s25, v1")
        S("v_min_u32 v2, CODE_LAST, v2")
        S("global_load_dwordx4 v[252:255], v2, s[96:97]")
    S("s_cmp_ge_u32 s20, 4")
    S("s_cbranch_scc1 L_helper")
    return S

NITEMS=33
def slot_imm(i):
    return (i*SLOT)

def gen_C():
    S=Stream('C')
    S("s_nop 4")
    S("s_setprio 2")
    srd(S,40,4,5,2048*1024)
    srd(S,44,16,17,2048*1024)
    srd(S,32,18,19,0)
    srd(S,36,18,19,WS_USED)
    S("s_and_b32 s50, s20, 1")
    S("s_lshr_b32 s51, s20, 1")
    S("s_lshr_b32 s52, s22, 3")
    S("s_and_b32 s53, s22, 7")
    S("s_mov_b32 s54, s20")
    S("s_lshl_b32 s55, s52, 1")
    S("s_add_u32 s55, s55, s50")
    S("s_lshl_b32 s98, s21, 2")
    S("s_add_u32 s98, s98, s55")
    S("v_lshrrev_b32 v2, 5, v0")
    S("v_lshlrev_b32 v2, 9, v2")
    S("v_and_b32 v7, 15, v0")
    S("v_lshrrev_b32 v7, 2, v7")
    S("v_lshl_add_u32 v2, v7, 6, v2")
    S("v_bfe_u32 v7, v0, 4, 1")
    S("v_lshl_add_u32 v2, v7, 5, v2")
    S("v_and_b32 v7, 3, v0")
    S("v_lshl_add_u32 v2, v7, 3, v2")
    S(f"s_mov_b32 s57, {FLAGS}")
    S("v_lshlrev_b32 v3, 2, v0")
    S("v_add_u32 v3, s57, v3")
    S("s_lshl_b32 s58, s22, 4")
    S("s_lshl_b32 s59, s20, 2")
    S("s_add_u32 s58, s58, s59")
    S("s_add_u32 s58, s58, s57")
    S("v_mov_b32 v4, s58")
    for r in (30,31,34,35,38,39): S(f"v_mov_b32 v{r}, 0")
    stamp(S,0)
    if cfg.tlbwarm:
        S("v_mov_b32 v8, 0")
        S("s_mov_b64 exec, 1")
        S("buffer_load_dword v120, v8, s[44:47], 0 offen")
        S(f"buffer_load_dword v121, v8, s[28:31], 0 offen offset:{0x800}")
        S("s_mov_b64 exec, -1")
    S("v_lshrrev_b32 v8, 2, v0")
    S("v_and_b32 v9, 3, v0")
    S("s_lshl_b32 s57, s22, 6")
    S("v_lshlrev_b32 v10, 4, v9")
    S("v_add_u32 v10, s57, v10")
    S("s_lshl_b32 s57, s21, 7")
    S("s_lshl_b32 s58, s20, 5")
    S("s_add_u32 s58, s58, s57")
    S("v_add_u32 v11, s58, v8")
    S("v_lshl_add_u32 v11, v11, 10, v10")
    tA=S("buffer_load_dwordx4 v[16:19], v11, s[40:43], 0 offen")
    S("v_add_u32 v12, 0x4000, v11")
    tB=S("buffer_load_dwordx4 v[20:23], v12, s[40:43], 0 offen")
    S("s_sub_i32 s59, s57, 16")
    S("v_add_u32 v12, s59, v8")
    S("v_max_i32 v12, 0, v12")
    S("v_lshl_add_u32 v12, v12, 10, v10")
    tH=S("buffer_load_dwordx4 v[24:27], v12, s[40:43], 0 offen")
    if cfg.p0fast:
        S("s_lshl_b32 s57, s54, 15"); S("s_lshl_b32 s58, s22, 11"); S("s_add_u32 s57, s57, s58")
        S(f"s_add_u32 s59, s58, {HALOX}"); S(f"s_add_u32 s57, s57, {XB[0]}")
        S("buffer_load_dword v100, v1, s[28:31], s57 offen"); S("buffer_load_dword v100, v1, s[28:31], s57 offen offset:1024")
        S("buffer_load_dword v100, v1, s[28:31], s59 offen"); S("buffer_load_dword v100, v1, s[28:31], s59 offen offset:1024")
        S("s_lshr_b32 s60, s22, 1"); S("s_lshl_b32 s60, s60, 9")
        S("s_lshl_b32 s57, s54, 12"); S("s_add_u32 s57, s57, s60"); S(f"s_add_u32 s57, s57, {STATS}"); S(f"s_add_u32 s59, s60, {HSTATS}")
        S("s_mov_b64 exec, 0xffffffff")
        S("buffer_load_dword v100, v1, s[28:31], s57 offen"); tH=S("buffer_load_dword v100, v1, s[28:31], s59 offen")
        S("s_mov_b64 exec, -1")
    S.items.append(Ins("s_waitcnt lgkmcnt(0)"))
    stamp(S,56,pv=102)
    S("s_getreg_b32 s60, hwreg(HW_REG_XCC_ID)")
    S("s_and_b32 s60, s60, 7")
    S("s_add_u32 s60, s60, s23")
    S("s_add_u32 s89, s60, 16")
    S(f"s_mov_b32 s57, {IDS}")
    S("s_lshl_b32 s58, s22, 2")
    S("s_add_u32 s58, s58, s57")
    S("v_mov_b32 v14, s58")
    S("v_mov_b32 v15, s89")
    S("s_mov_b64 exec, 1")
    S("buffer_store_dword v15, v14, s[28:31], 0 offen sc1")
    S("s_mov_b64 exec, -1")
    if cfg.s0=='early': S.barrier("S0")
    S.wait(tH)
    stamp(S,57,pv=102)
    if cfg.p0fast:
        Li=S.newlabel('Lidp'); Lid=S.newlabel('Lidd')
        S(f"s_add_u32 s66, s18, {IDS}"); S("s_addc_u32 s67, s19, 0")
        S("s_add_u32 s68, s23, 16"); S("s_mov_b32 s69, 0")
        S.label(Li)
        S.smem("s_load_dwordx16 s[72:87], s[66:67], 0 glc")
        S("s_add_u32 s69, s69, 1")
        S.items.append(Ins("s_waitcnt lgkmcnt(0)"))
        S("s_mov_b32 s64, 0"); S("s_mov_b32 s65, 0")
        for i in range(16):
            S(f"s_xor_b32 s57, s{72+i}, s89"); S("s_or_b32 s65, s65, s57")
            S(f"s_sub_u32 s57, s{72+i}, s68"); S("s_and_b32 s57, s57, 0xfffffff8"); S("s_or_b32 s64, s64, s57")
        S("s_cmp_eq_u32 s64, 0")
        S(f"s_cbranch_scc1 {Lid}")
        S("s_sleep 1")
        S(f"s_cmp_lt_u32 s69, {cfg.timeout}")
        S(f"s_cbranch_scc1 {Li}")
        S.label(Lid)
        S("s_cmp_eq_u32 s65, 0")
        S(f"s_cselect_b32 s34, {WS_USED}, 0")
        S(f"s_cselect_b32 s38, 0, {WS_USED}")
        if os.environ.get('FORCE_SLOW'):
            S("s_mov_b32 s34, 0"); S(f"s_mov_b32 s38, {WS_USED}")
    S("v_mov_b32 v7, 0x3f803f80")
    outs=[]
    for gi,(base) in enumerate((16,20,24)):
        sm=64+2*gi; sq=65+2*gi
        S(f"v_dot2_f32_bf16 v{sm}, v{base}, v7, 0")
        S(f"v_dot2_f32_bf16 v{sq}, v{base}, v{base}, 0")
        for d in range(1,4):
            S(f"v_dot2_f32_bf16 v{sm}, v{base+d}, v7, v{sm}")
            S(f"v_dot2_f32_bf16 v{sq}, v{base+d}, v{base+d}, v{sq}")
    for qp in ("[1,0,3,2]","[2,3,0,1]"):
        for r in range(64,70):
            S(f"v_add_f32_dpp v{r}, v{r}, v{r} quad_perm:{qp} row_mask:0xf bank_mask:0xf")
    mov64(S,66,0x2222222222222222)
    for gi in range(3):
        S(f"v_cndmask_b32 v{72+gi}, v{64+2*gi}, v{65+2*gi}, s[66:67]")
    S("v_lshlrev_b32 v12, 9, v9")
    S("v_lshl_add_u32 v12, v8, 4, v12")
    S("v_lshlrev_b32 v13, 2, v9")
    S("v_lshl_add_u32 v13, v8, 4, v13")
    S("s_lshl_b32 s57, s54, 15")
    S("s_lshl_b32 s58, s22, 11")
    S("s_add_u32 s57, s57, s58")
    S(f"s_add_u32 s57, s57, {XB[0]}")
    S(f"s_add_u32 s59, s58, {HALOX}")
    def st2(data, voff, soff, imm, w='x4'):
        S(f"buffer_store_dword{w} {data}, v{voff}, s[32:35], s{soff} offen offset:{imm}")
        S(f"buffer_store_dword{w} {data}, v{voff}, s[36:39], s{soff} offen offset:{imm} sc1")
    def st1(data, voff, soff, imm, w='x4'):
        S(f"buffer_store_dword{w} {data}, v{voff}, s[28:31], s{soff} offen offset:{imm} sc1")
    stP=st2 if cfg.p0fast else st1
    stP("v[16:19]",12,57,0); stP("v[20:23]",12,57,256); stP("v[24:27]",12,59,256)
    S("s_lshr_b32 s60, s22, 1")
    S("s_lshl_b32 s60, s60, 9")
    S("s_and_b32 s61, s22, 1")
    S("s_lshl_b32 s61, s61, 3")
    S("s_add_u32 s60, s60, s61")
    S("s_lshl_b32 s57, s54, 12")
    S("s_add_u32 s57, s57, s60")
    S(f"s_add_u32 s57, s57, {STATS}")
    S(f"s_add_u32 s59, s60, {HSTATS}")
    mov64(S,66,0x3333333333333333)
    S("s_mov_b64 exec, s[66:67]")
    stP("v72",13,57,0,''); stP("v73",13,57,256,''); stP("v74",13,59,256,'')
    S("s_mov_b64 exec, -1")
    stamp(S,58,pv=102)
    S("s_mov_b32 s49, 1")
    def set_flag():
        S.force_wait(vm=True)
        S("s_add_u32 s57, s23, s49")
        S("v_mov_b32 v7, s57")
        S("s_mov_b64 exec, 1")
        S("buffer_store_dword v7, v4, s[32:35], 0 offen")
        S("buffer_store_dword v7, v4, s[36:39], 0 offen sc1")
        S("s_mov_b64 exec, -1")
    if cfg.s0=='mid': S.barrier("S0")
    S.force_wait(vm=True)
    S("s_add_u32 s57, s23, s49")
    S("v_mov_b32 v7, s57")
    S("s_lshl_b32 s57, s20, 6")
    S("s_lshl_b32 s58, s22, 2")
    S("s_add_u32 s57, s57, s58")
    S(f"s_add_u32 s57, s57, {PF0}")
    S("v_mov_b32 v8, s57")
    S("s_mov_b64 exec, 1")
    if cfg.p0fast:
        S("buffer_store_dword v7, v8, s[32:35], 0 offen")
        S("buffer_store_dword v7, v8, s[36:39], 0 offen sc1")
    else:
        S("buffer_store_dword v7, v8, s[28:31], 0 offen sc1")
    S("s_mov_b64 exec, -1")
    if cfg.s0=='late': S.barrier("S0")
    stamp(S,1)
    if cfg.stop_after==0:
        S("s_branch L_fin"); return S
    S("s_mov_b32 s94, 0")
    S("s_mov_b32 s48, 0")
    S.label("L_layer")
    S("s_nop 4")
    S.vm_done=S.vm_issued; S.lg_done=S.lg_issued
    S.force_wait(vm=True,lg=True)
    S("s_lshl_b32 s56, s48, 14")
    def layer_offsets():
        S("s_cmp_eq_u32 s48, 0")
        csel(S,70,XB[0],XB[2])
        csel(S,71,STATS,STATS+2*SBUF)
        csel(S,72,OB[0],OB[1])
        csel(S,73,XB[1],XB[3])
        csel(S,74,STATS+SBUF,STATS+SBUF)
        csel(S,75,HB[0],HB[1])
    def slot(dst_s, i, extra_s=None, extra_imm=0):
        S(f"s_add_u32 s{dst_s}, s56, {i*SLOT}")
        if extra_s is not None: S(f"s_add_u32 s{dst_s}, s{dst_s}, s{extra_s}")
        S(f"s_and_b32 s{dst_s}, s{dst_s}, 0x1ffff")
        if extra_imm: S(f"s_add_u32 s{dst_s}, s{dst_s}, {extra_imm}")
    def setaddr(vreg, i, extra_s=None, add_s=None):
        def f(S):
            slot(57,i,extra_s)
            if add_s is not None: S(f"s_add_u32 s57, s57, s{add_s}")
            S(f"v_add_u32 v{vreg}, s57, v2")
        return f
    def setaddr2(vreg, i, extra_s=None, add_s=None):
        def f(S):
            slot(57,i,extra_s)
            if add_s is not None: S(f"s_add_u32 s57, s57, s{add_s}")
            S(f"v_add_u32 v{vreg}, s57, v{12 if vreg==5 else 13}")
        return f
    def expect():
        S("s_add_u32 s68, s23, s49")
    def bump(): S("s_add_u32 s49, s49, 1")

    Lv1=S.newlabel('Lp1v'); Ld1=S.newlabel('Lp1d'); Lsp=S.newlabel('Lp1s')
    S("s_cmp_eq_u32 s48, 0")
    S(f"s_cbranch_scc0 {Lv1}")
    S("s_lshl_b32 s57, s20, 6")
    S(f"s_add_u32 s57, s57, {PF0}")
    S("s_add_u32 s66, s18, s57")
    S("s_addc_u32 s67, s19, 0")
    S("s_add_u32 s68, s23, 1")
    S("s_mov_b32 s69, 0")
    S.label(Lsp)
    S.smem("s_load_dwordx16 s[72:87], s[66:67], 0 glc")
    S("s_add_u32 s69, s69, 1")
    S.items.append(Ins("s_waitcnt lgkmcnt(0)"))
    for i in range(16): S(f"s_xor_b32 s{72+i}, s{72+i}, s68")
    for st_ in (8,4,2,1):
        for i in range(st_): S(f"s_or_b32 s{72+i}, s{72+i}, s{72+i+st_}")
    S("s_cmp_eq_u32 s72, 0")
    S(f"s_cbranch_scc1 {Ld1}")
    S("s_sleep 2")
    S(f"s_cmp_lt_u32 s69, {cfg.timeout}")
    S(f"s_cbranch_scc1 {Lsp}")
    S(f"s_branch {Ld1}")
    S.label(Lv1)
    S("s_mov_b32 s58, 0x55555555")
    S("s_lshl_b32 s58, s58, s50")
    S("s_cmp_eq_u32 s51, 0")
    S("s_cselect_b32 s64, s58, 0")
    S("s_cselect_b32 s65, 0, s58")
    expect()
    poll(S,3,7,28,68,64,69,66)
    S.label(Ld1)
    S("s_nop 1")
    layer_offsets()
    S.vm_done=S.vm_issued-0
    stamp(S,2,48)
    S("s_lshl_b32 s78, s54, 15")
    S("s_add_u32 s78, s78, s70")
    S("s_lshl_b32 s79, s54, 12")
    S("s_add_u32 s79, s79, s71")
    btok={}
    def ldfrag(s, sbase=78):
        def f(S):
            if s%4==0 and s>0: S(f"s_add_u32 s{sbase}, s{sbase}, 4096")
            btok[s]=S(f"buffer_load_dwordx4 v[{128+4*(s%32)}:{131+4*(s%32)}], v1, s[28:31], s{sbase} offen offset:{(s%4)*1024} sc1{cfg.ntact}")
        return f
    PF=cfg.PF
    for s in range(PF): ldfrag(s)(S)
    S("v_and_b32 v7, 31, v0")
    S("v_lshlrev_b32 v7, 4, v7")
    st_regs=list(range(96,128))
    stt={}
    def ldstat(u):
        def f(S): stt[u]=S(f"buffer_load_dwordx4 v[{96+4*u}:{99+4*u}], v7, s[28:31], s79 offen offset:{u*512} sc1")
        return f
    def load_sched():
        q=[('f',i) for i in range(PF,PF+6)]+[('s',u) for u in range(8)]+[('f',i) for i in range(PF+6,32)]
        return q
    def mkpost(item):
        k,i=item
        return (ldfrag(i),1.5 if i%4==0 else 1) if k=='f' else (ldstat(i),1)
    S.barrier("Ba")
    stamp(S,3,48)
    AK,AV,AQ=64,80,96
    steps=[]; fill=[]; lq=load_sched()
    for s in range(32):
        for t,(acc,vr,it) in enumerate(((AK,5,0),(AV,6,1))):
            d=dict(acc=acc,c=('0' if s==0 else accs(acc)),a=('tr',vr,(s%16)*1024),b=128+4*s,btok=(lambda s=s: btok[s]))
            if s%16==0: d['pre_reads']=setaddr(vr, it+2*(s//16))
            if lq:
                d['post'],d['postcost']=mkpost(lq.pop(0))
            steps.append(d)
    steps[cfg.ba2]['after']=(lambda S: S.barrier("Ba2"))
    if cfg.prof and cfg.prof_kv:
        for k,ix in ((3,59),(11,60),(19,61),(35,62),(51,63)):
            steps[k]['after']=(lambda S,ix=ix: stamp(S,ix,48))
    def waitst(S): S.wait(stt[7])
    fill.append((30,0,waitst))
    for c,t in stats_to_frag(S, st_regs, (8,9,10,11), 28, out_rstd=12): fill.append((30,c,t))
    nstat_fill=len(fill)
    cstok={}
    def after_kv(S):
        pbar(S,"Bb")
        S(f"v_lshlrev_b32 v13, 3, v0")
        S(f"v_add_u32 v13, {CST}, v13")
        cstok['k']=S(f"ds_read_b64 v[32:33], v13 offset:{0*512}")
        cstok['v']=S(f"ds_read_b64 v[36:37], v13 offset:{1*512}")
        if not cfg.p0fast:
            S(f"s_mov_b32 s57, {IDS}")
            S("v_lshlrev_b32 v27, 2, v0")
            S("v_add_u32 v27, s57, v27")
            cstok['id']=S("buffer_load_dword v127, v27, s[28:31], 0 offen sc1")
    steps[-1]['after']=after_kv
    nkv=len(steps)
    qsteps=[]
    for s in range(32):
        d=dict(acc=AQ,c=('0' if s==0 else accs(AQ)),a=('tr',5,(s%16)*1024),b=128+4*s)
        if s%16==0: d['pre_reads']=setaddr(5, 4+s//16)
        qsteps.append(d)
    qsteps[0]['need_fill']=nstat_fill
    corrK=dict(acc=AK,c=accs(AK),a=('reg',32,lambda: cstok['k']),b=28)
    corrV=dict(acc=AV,c=accs(AV),a=('reg',36,lambda: cstok['v']),b=28)
    def rdq(S): cstok['q']=S(f"ds_read_b64 v[32:33], v13 offset:{2*512}")
    corrV['post']=rdq
    corrQ=dict(acc=AQ,c=accs(AQ),a=('reg',32,lambda: cstok['q']),b=28)
    steps += qsteps[:4]+[corrK,corrV]+qsteps[4:]+[corrQ]
    kvdone=nkv+4+2+3
    S_k=[]
    for hd in range(2):
        for i in range(8):
            fill.append((kvdone,1,f"v_mul_f32 v{AK+8*hd+i}, v{AK+8*hd+i}, v12"))
        for i in range(4):
            fill.append((kvdone,1,f"v_cvt_pk_bf16_f32 v{16+4*hd+i}, v{AK+8*hd+2*i}, v{AK+8*hd+2*i+1}"))
    def kvaddr(S):
        S("v_and_b32 v14, 31, v0")
        S("s_lshl_b32 s57, s20, 5")
        S("s_add_u32 s57, s57, 16")
        S("v_add_u32 v14, s57, v14")
        S("v_lshlrev_b32 v14, 4, v14")
        S(f"v_add_u32 v14, {SCR}, v14")
        S("v_lshrrev_b32 v15, 5, v0")
        S("v_mul_u32_u24 v15, 2304, v15")
        S("v_add_u32 v24, v14, v15")
        S("v_add_u32 v25, v24, v15")
    fill.append((kvdone,7,kvaddr))
    for hd in range(2):
        fill.append((kvdone,1,f"ds_write_b128 v24, v[{16+4*hd}:{19+4*hd}] offset:{KBUF-SCR+hd*4608}"))
    for q in range(4):
        for i in range(4):
            fill.append((kvdone,1,f"v_mul_f32 v{AV+4*q+i}, v{AV+4*q+i}, v12"))
        hd,part=q//2,q%2
        fill.append((kvdone,1,f"ds_write_b128 v25, v[{AV+4*q}:{AV+4*q+3}] offset:{VBUF-SCR+hd*9216+part*2304}"))
    mfma_stream(S,steps,fill)
    stamp(S,4,48)
    for i in range(16): S(f"v_mul_f32 v{AQ+i}, v{AQ+i}, v12")
    for i in range(8): S(f"v_cvt_pk_bf16_f32 v{112+i}, v{AQ+2*i}, v{AQ+2*i+1}")
    if not cfg.p0fast:
        Lok=S.newlabel('Lidok'); Lrt=S.newlabel('Lidretry')
        S.wait(cstok['id'])
        mov64(S,64,0xFFFF)
        S("s_add_u32 s68, s23, 16")
        S("v_subrev_u32 v126, s68, v127")
        S("v_cmp_gt_u32 vcc, 8, v126")
        S("s_and_b64 s[66:67], vcc, s[64:65]")
        S("s_cmp_eq_u64 s[66:67], s[64:65]")
        S(f"s_cbranch_scc1 {Lok}")
        poll(S,27,126,28,68,64,69,66,span=8)
        S.label(Lok)
        S("s_sub_u32 s57, s89, s68")
        S("v_cmp_eq_u32 vcc, s57, v126")
        S("s_and_b64 s[66:67], vcc, s[64:65]")
        S("s_cmp_eq_u64 s[66:67], s[64:65]")
        S(f"s_cselect_b32 s34, {WS_USED}, 0")
        S(f"s_cselect_b32 s38, 0, {WS_USED}")
        if os.environ.get('FORCE_SLOW'):
            S("s_mov_b32 s34, 0"); S(f"s_mov_b32 s38, {WS_USED}")
    S.wait(lg_all=True)
    S.barrier("Bc")
    stamp(S,5,48)
    S("v_subrev_u32 v24, 224, v24")
    S("v_subrev_u32 v25, 224, v25")
    KU=[128+4*i for i in range(16)]
    ktok={}
    for hd in range(2):
        for w in range(8):
            if hd==1 and w==7: S.wait(ktok[(0,0)])
            ktok[(hd,w)]=S(f"ds_read_b128 v[{KU[hd*8+w]}:{KU[hd*8+w]+3}], v24 offset:{KBUF-SCR+hd*4608+(14-2*w)*16}")
    SA=[192+i for i in range(8)]; SB=[200+i for i in range(8)]
    for hd,SS in ((0,SA),(1,SB)):
        S.wait(ktok[(hd,7)])
        for d in range(4):
            for w in range(8):
                k=KU[hd*8+w]+d
                S(f"v_dot2_f32_bf16 v{SS[w]}, v{112+4*hd+d}, v{k}, {'0' if d==0 else 'v%d'%SS[w]}")
    VU0=[208+4*i for i in range(12)]+[64+4*i for i in range(4)]
    VU1=[128+4*i for i in range(16)]
    vtok={}
    def rdV(hd,VU,lo,hi):
        for idx in range(lo,hi):
            w,part=idx//2,idx%2
            vtok[(hd,w,part)]=S(f"ds_read_b128 v[{VU[idx]}:{VU[idx]+3}], v25 offset:{VBUF-SCR+hd*9216+part*2304+(14-2*w)*16}")
    rdV(0,VU0,0,14)
    for w in range(8): S(f"v_permlane32_swap_b32 v{SA[w]}, v{SB[w]}")
    for w in range(8): S(f"v_add_f32 v{SA[w]}, v{SA[w]}, v{SB[w]}")
    Lm=S.newlabel('Lnomask')
    S("s_lshl_b32 s57, s21, 2")
    S("s_add_u32 s57, s57, s20")
    S("s_cmp_lg_u32 s57, 0")
    S(f"s_cbranch_scc1 {Lm}")
    S("v_and_b32 v7, 31, v0")
    S(f"v_mov_b32 v26, {hexf(-4e9)}")
    for w in range(1,8):
        S(f"v_cmp_gt_u32 vcc, {2*w}, v7")
        S(f"v_cndmask_b32 v{SA[w]}, v{SA[w]}, v26, vcc")
    S.label(Lm)
    S("s_nop 1")
    cs=0.25*1.4426950408889634
    S(f"v_max3_f32 v26, v{SA[0]}, v{SA[1]}, v{SA[2]}")
    S(f"v_max3_f32 v27, v{SA[3]}, v{SA[4]}, v{SA[5]}")
    S(f"v_max3_f32 v26, v26, v{SA[6]}, v{SA[7]}")
    S(f"v_max_f32 v26, v26, v27")
    S(f"s_mov_b32 s57, {hexf(cs)}")
    S(f"v_mul_f32 v26, {hexf(-cs)}, v26")
    for w in range(8): S(f"v_fma_f32 v{SA[w]}, v{SA[w]}, s57, v26")
    for w in range(8): S(f"v_exp_f32 v{SA[w]}, v{SA[w]}")
    S.wait(vtok[(0,0,1)])
    rdV(0,VU0,14,16)
    S(f"v_add_f32 v26, v{SA[0]}, v{SA[1]}")
    S(f"v_add_f32 v27, v{SA[2]}, v{SA[3]}")
    S(f"v_add_f32 v15, v{SA[4]}, v{SA[5]}")
    S(f"v_add_f32 v14, v{SA[6]}, v{SA[7]}")
    S(f"v_add_f32 v26, v26, v27")
    S(f"v_add_f32 v15, v15, v14")
    S(f"v_add_f32 v26, v26, v15")
    S(f"v_rcp_f32 v26, v26")
    for w in range(8): S(f"v_mul_f32 v{SA[w]}, v{SA[w]}, v26")
    for w in range(8): S(f"v_mov_b32 v{SB[w]}, v{SA[w]}")
    for w in range(8): S(f"v_permlane32_swap_b32 v{SA[w]}, v{SB[w]}")
    def pv(hd,VU,P,cb=None):
        for w in range(8):
            p=P[w]; pe=p&~1
            sel = ("op_sel:[0,0,0] op_sel_hi:[1,0,1]","op_sel:[0,0] op_sel_hi:[1,0]") if p%2==0 else ("op_sel:[0,1,0] op_sel_hi:[1,1,1]","op_sel:[0,1] op_sel_hi:[1,1]")
            for part in range(2):
                S.wait(vtok[(hd,w,part)])
                u=VU[2*w+part]
                for hh in range(2):
                    o=96+8*hd+4*part+2*hh
                    if w==0:
                        S(f"v_pk_mul_f32 v[{o}:{o+1}], v[{u+2*hh}:{u+2*hh+1}], v[{pe}:{pe+1}] {sel[1]}")
                    else:
                        S(f"v_pk_fma_f32 v[{o}:{o+1}], v[{u+2*hh}:{u+2*hh+1}], v[{pe}:{pe+1}], v[{o}:{o+1}] {sel[0]}")
                if cb: cb(2*w+part)
    pv(0,VU0,SA,cb=lambda idx: (rdV(1,VU1,idx-2,idx-1) if idx>=2 else None))
    rdV(1,VU1,14,15)
    S.wait(vtok[(1,0,0)])
    rdV(1,VU1,15,16)
    pv(1,VU1,SB)
    for i in range(8): S(f"v_cvt_pk_bf16_f32 v{16+i}, v{96+2*i}, v{97+2*i}")
    for b in (16,20):
        S(f"v_permlane32_swap_b32 v{b}, v{b+2}")
        S(f"v_permlane32_swap_b32 v{b+1}, v{b+3}")
    S("s_lshl_b32 s57, s54, 15")
    S("s_lshl_b32 s58, s22, 11")
    S("s_add_u32 s57, s57, s58")
    S("s_add_u32 s57, s57, s72")
    st2("v[16:19]",1,57,0); st2("v[20:23]",1,57,1024)
    stamp(S,6,48)
    bump(); set_flag()
    stamp(S,7,48)
    if cfg.stop_after==1:
        S("s_branch L_fin"); return S

    def gemm2(name, nsteps, s_act, act_tile_bytes, khalf_bytes, s_res, mask_fn, items_fn, bars, s_out, s_sout, final):
        S.comment(f"======== {name} ========")
        AO,AT=64,80
        S("v_lshrrev_b32 v12, 5, v0"); S("v_lshlrev_b32 v12, 10, v12")
        S("v_bfe_u32 v13, v0, 2, 2"); S("v_lshl_add_u32 v12, v13, 7, v12")
        S("v_bfe_u32 v13, v0, 3, 1"); S("v_lshl_add_u32 v12, v13, 6, v12")
        S("v_bfe_u32 v13, v0, 4, 1"); S("v_lshl_add_u32 v12, v13, 5, v12")
        S("v_and_b32 v13, 3, v0"); S("v_lshl_add_u32 v12, v13, 3, v12")
        S("s_lshl_b32 s57, s51, 6")
        S("v_xor_b32 v12, s57, v12")
        S("v_xor_b32 v13, 64, v12")
        S("v_and_b32 v7, 31, v0")
        S("v_lshlrev_b32 v7, 4, v7")
        S("v_lshrrev_b32 v8, 5, v0")
        S("v_lshl_add_u32 v7, v8, 3, v7")
        S("s_lshl_b32 s57, s55, 15")
        S("s_lshl_b32 s58, s53, 12")
        S("s_add_u32 s57, s57, s58")
        S("s_lshl_b32 s58, s51, 11")
        S("s_add_u32 s80, s57, s58")
        S(f"s_add_u32 s57, s80, s{s_res}")
        rt=None
        if name=="P2":
            Lx=S.newlabel('Lresx'); Ly=S.newlabel('Lresd')
            S("s_cmp_eq_u32 s48, 0")
            S(f"s_cbranch_scc1 {Lx}")
        for q in range(4):
            rt=S(f"buffer_load_dwordx2 v[{16+2*q}:{17+2*q}], v7, s[28:31], s57 offen offset:{q*512} sc1")
        if name=="P2":
            S(f"s_branch {Ly}")
            S.label(Lx)
            S("v_and_b32 v9, 31, v0")
            S("s_lshl_b32 s57, s98, 5")
            S("v_add_u32 v9, s57, v9")
            S("v_lshlrev_b32 v9, 10, v9")
            S("v_lshl_add_u32 v9, v8, 3, v9")
            S("s_lshl_b32 s57, s53, 7")
            S("s_lshl_b32 s58, s51, 6")
            S("s_add_u32 s57, s57, s58")
            for q in range(4):
                S(f"buffer_load_dwordx2 v[{16+2*q}:{17+2*q}], v9, s[40:43], s57 offen offset:{q*16}")
            S.label(Ly)
            S.force_wait(vm=True)
        S.wait(rt)
        for q in range(4):
            for d in range(2):
                S(f"v_lshlrev_b32 v{AO+4*q+2*d}, 16, v{16+2*q+d}")
                S(f"v_and_b32 v{AO+4*q+2*d+1}, 0xffff0000, v{16+2*q+d}")
        mask_fn()
        expect()
        sb=8 if name=="P2" else 20
        poll(S,3,7,28,68,64,69,66)
        stamp(S,sb,48)
        S(f"s_mul_i32 s78, s55, {act_tile_bytes}")
        S(f"s_add_u32 s78, s78, s{s_act}")
        S(f"s_mul_i32 s57, s51, {khalf_bytes}")
        S("s_add_u32 s78, s78, s57")
        bt={}
        def ld(s):
            def f(S):
                if s%4==0 and s>0: S("s_add_u32 s78, s78, 4096")
                r=128+4*(s%32)
                bt[s]=S(f"buffer_load_dwordx4 v[{r}:{r+3}], v1, s[28:31], s78 offen offset:{(s%4)*1024} sc1{cfg.ntact}")
            return f
        PF2=cfg.PF2
        nxt2=[min(PF2,nsteps)]
        for s in range(min(PF2,nsteps)): ld(s)(S)
        S.barrier(bars[0])
        stamp(S,sb+1,48)
        steps=[]
        for s in range(nsteps):
            for t,(acc,vr) in enumerate(((AO,5),(AT,6))):
                c = accs(acc) if (t==0 or s>0) else '0'
                d=dict(acc=acc,c=c,b=128+4*(s%32),btok=(lambda s=s: bt[s]))
                off,pre,bar=items_fn(s,t)
                d['a']=('tr',vr,off); d['a2']=512
                if pre: d['pre_reads']=pre
                lim = s+cfg.PF2MAX
                if nxt2[0]<nsteps and nxt2[0]<=lim:
                    d['post']=ld(nxt2[0]); d['postcost']=1.5 if nxt2[0]%4==0 else 1; nxt2[0]+=1
                if t==1:
                    if bar: d['after']=(lambda S,bar=bar: pbar(S,bar))
                steps.append(d)
        if name=="P2": steps[cfg.bd2]['after']=(lambda S: S.barrier("Bd2"))
        mfma_stream(S,steps,[])
        stamp(S,sb+2,48)
        S("s_lshl_b32 s57, s20, 12")
        S(f"s_add_u32 s57, s57, {SCR}")
        S("v_add_u32 v8, s57, v1")
        S("s_xor_b32 s58, s57, 0x2000")
        S("v_add_u32 v9, s58, v1")
        for q in range(4): S(f"ds_write_b128 v8, v[{AT+4*q}:{AT+4*q+3}] offset:{q*1024}")
        S.wait(lg_all=True)
        S.barrier(bars[-1])
        stamp(S,sb+3,48)
        tk=[S(f"ds_read_b128 v[{96+4*q}:{99+4*q}], v9 offset:{q*1024}") for q in range(4)]
        for q in range(4):
            S.wait(tk[q])
            S(f"v_pk_add_f32 v[{AO+4*q}:{AO+4*q+1}], v[{AO+4*q}:{AO+4*q+1}], v[{96+4*q}:{97+4*q}]")
            S(f"v_pk_add_f32 v[{AO+4*q+2}:{AO+4*q+3}], v[{AO+4*q+2}:{AO+4*q+3}], v[{96+4*q+2}:{97+4*q+2}]")
        for i in range(8): S(f"v_cvt_pk_bf16_f32 v{16+i}, v{AO+2*i}, v{AO+2*i+1}")
        S(f"v_pk_mul_f32 v[96:97], v[{AO}:{AO+1}], v[{AO}:{AO+1}]")
        S(f"v_pk_add_f32 v[98:99], v[{AO}:{AO+1}], v[{AO+2}:{AO+3}]")
        S(f"v_pk_fma_f32 v[96:97], v[{AO+2}:{AO+3}], v[{AO+2}:{AO+3}], v[96:97]")
        for i in range(2,8):
            S(f"v_pk_add_f32 v[98:99], v[98:99], v[{AO+2*i}:{AO+2*i+1}]")
            S(f"v_pk_fma_f32 v[96:97], v[{AO+2*i}:{AO+2*i+1}], v[{AO+2*i}:{AO+2*i+1}], v[96:97]")
        for b in (16,20):
            S(f"v_permlane32_swap_b32 v{b}, v{b+2}")
            S(f"v_permlane32_swap_b32 v{b+1}, v{b+3}")
        S("v_add_f32 v98, v98, v99")
        S("v_add_f32 v96, v96, v97")
        S("v_permlane32_swap_b32 v98, v96")
        S("v_add_f32 v98, v98, v96")
        S("v_and_b32 v10, 31, v0")
        S("v_lshlrev_b32 v10, 4, v10")
        S("v_lshrrev_b32 v11, 5, v0")
        S("v_lshl_add_u32 v10, v11, 2, v10")
        S("s_lshl_b32 s58, s53, 9")
        S("s_lshl_b32 s59, s51, 3")
        S("s_add_u32 s81, s58, s59")
        return
    def out_tl(s_out,s_sout):
        S(f"s_add_u32 s57, s80, s{s_out}")
        st2("v[16:19]",1,57,0); st2("v[20:23]",1,57,1024)
        S("s_lshl_b32 s58, s55, 12")
        S("s_add_u32 s58, s58, s81")
        S(f"s_add_u32 s58, s58, s{s_sout}")
        st2("v98",10,58,0,'')

    def mask2():
        S("s_lshl_b32 s57, s52, 1")
        S("s_add_u32 s57, s57, s50")
        S("s_mov_b32 s58, 0x11111111")
        S("s_lshl_b32 s58, s58, s57")
        S("s_cmp_eq_u32 s51, 0")
        S("s_cselect_b32 s64, s58, 0")
        S("s_cselect_b32 s65, 0, s58")
    S("s_lshl_b32 s82, s51, 15")
    S("s_lshl_b32 s83, s51, 14")
    def items2(s,t):
        pre=None
        if s%8==0: pre = setaddr2(5+t,6+s//8,extra_s=82)
        return (s%8)*2048,pre,None
    gemm2("P2",16,72,TILE,16384,70,mask2,items2,["Bd","Be"],73,74,False)
    out_tl(73,74)
    stamp(S,12,48)
    bump(); set_flag()
    stamp(S,13,48)
    if cfg.stop_after==2:
        S("s_branch L_fin"); return S

    S("s_mov_b32 s58, 0x55555555")
    S("s_lshl_b32 s58, s58, s50")
    S("s_cmp_eq_u32 s51, 0")
    S("s_cselect_b32 s64, s58, 0")
    S("s_cselect_b32 s65, 0, s58")
    expect()
    poll(S,3,7,28,68,64,69,66)
    stamp(S,14,48)
    S("s_lshl_b32 s78, s54, 15")
    S("s_add_u32 s78, s78, s73")
    S("s_lshl_b32 s79, s54, 12")
    S("s_add_u32 s79, s79, s74")
    btok.clear(); stt.clear()
    for s in range(PF): ldfrag(s)(S)
    S("v_and_b32 v7, 31, v0")
    S("v_lshlrev_b32 v7, 4, v7")
    lq=load_sched()
    S("s_lshl_b32 s57, s22, 3")
    S("s_mul_hi_u32 s57, s57, 0x55555556")
    S("s_lshl_b32 s57, s57, 11")
    S(f"s_mul_i32 s84, s54, {HTILE}")
    S("s_add_u32 s84, s84, s57")
    S("s_add_u32 s84, s84, s75")
    S.barrier("Bf")
    stamp(S,15,48)
    AG=[64,96]; AU=[80,112]
    gA,gB,gI=8,9,10
    steps=[]; fill=[]
    fill.append((30,0,lambda S: S.wait(stt[7])))
    for c,t in stats_to_frag(S, st_regs, (11,12,13,14), 28, gelu=(gA,gB,gI)): fill.append((30,c,t))
    nstat_fill=len(fill)
    S("v_lshlrev_b32 v15, 3, v0")
    S(f"v_add_u32 v15, {CST}, v15")
    cst={}
    def rdcs(key,reg,tile):
        def f(S): cst[key]=S(f"ds_read_b64 v[{reg}:{reg+1}], v15 offset:{tile*512}")
        return f
    def epi_g(p, ms):
        pass
    def epilogue(p, ms_g, ms_u):
        ag,au=AG[p%2],AU[p%2]
        T=[11,12,13,14]
        for q in range(4):
            idx=[4*q+i for i in range(4)]
            for i,k in enumerate(idx): fill.append((ms_g,1,f"v_mul_f32 v{T[i]}, v{ag+k}, v{ag+k}"))
            for i,k in enumerate(idx): fill.append((ms_g,1,f"v_fma_f32 v{T[i]}, v{T[i]}, v{gB}, v{gA}"))
            for i,k in enumerate(idx): fill.append((ms_g,1,f"v_mul_f32 v{T[i]}, v{T[i]}, v{ag+k}"))
            for i,k in enumerate(idx): fill.append((ms_g,2,f"v_exp_f32 v{T[i]}, v{T[i]}"))
            for i,k in enumerate(idx): fill.append((ms_g,1,f"v_fma_f32 v{T[i]}, v{T[i]}, v{gI}, v{gI}"))
            for i,k in enumerate(idx): fill.append((ms_g,2,f"v_rcp_f32 v{T[i]}, v{T[i]}"))
            for i,k in enumerate(idx): fill.append((ms_g,1,f"v_mul_f32 v{ag+k}, v{ag+k}, v{T[i]}"))
        for k in range(16): fill.append((ms_u,1,f"v_mul_f32 v{au+k}, v{au+k}, v{ag+k}"))
        for i in range(8): fill.append((ms_u,1,f"v_cvt_pk_bf16_f32 v{16+i}, v{au+2*i}, v{au+2*i+1}"))
        for b in (16,20):
            fill.append((ms_u,2,f"v_permlane32_swap_b32 v{b}, v{b+2}"))
            fill.append((ms_u,2,f"v_permlane32_swap_b32 v{b+1}, v{b+3}"))
        def stf(S,p=p):
            S(f"s_add_u32 s57, s84, {p*2048}")
            st2("v[16:19]",1,57,0); st2("v[20:23]",1,57,1024)
        fill.append((ms_u,4,stf))
    gbars=["G1","G2","G3","G4","G5","G6"]
    for p in range(2):
        for s in range(32):
            for t,(acc,vr) in enumerate(((AG[p%2],5),(AU[p%2],6))):
                d=dict(acc=acc,c=('0' if s==0 else accs(acc)),a=('tr',vr,(s%16)*1024),b=128+4*s)
                if p==0: d['btok']=(lambda s=s: btok[s])
                if s%16==0: d['pre_reads']=setaddr(vr,10+4*p+2*(s//16)+t)
                if p==0 and lq:
                    d['post'],d['postcost']=mkpost(lq.pop(0))
                if t==1 and s%16==15:
                    bar=gbars[2*p+s//16]
                    if s==31:
                        def aft(S,bar=bar,p=p):
                            pbar(S,bar)
                            rdcs(('g',p),32,3+2*p)(S); rdcs(('u',p),36,4+2*p)(S)
                        d['after']=aft
                    else:
                        d['after']=(lambda S,bar=bar: pbar(S,bar))
                steps.append(d)
        steps.append(('corr',p))
    p=2
    for t,(acc,it0) in enumerate(((AG[0],18),(AU[0],20))):
        for s in range(32):
            d=dict(acc=acc,c=('0' if s==0 else accs(acc)),a=('tr',5+t,(s%16)*1024),b=128+4*s)
            if s%16==0: d['pre_reads']=setaddr(5+t,it0+s//16)
            if s==31:
                bar=gbars[4+t]
                def aft(S,bar=bar,t=t):
                    pbar(S,bar)
                    rdcs(('g2' if t==0 else 'u2'),32 if t==0 else 36,7+t)(S)
                d['after']=aft
            steps.append(d)
        steps.append(('corr2',t))
    out=[]; pend=[]
    for st in steps:
        if isinstance(st,tuple):
            pend.append([st,3]); continue
        out.append(st)
        for pe in pend: pe[1]-=1
        while pend and pend[0][1]<=0:
            kind,idx=pend.pop(0)[0]
            if kind=='corr':
                out.append(dict(acc=AG[idx%2],c=accs(AG[idx%2]),a=('reg',32,lambda idx=idx: cst[('g',idx)]),b=28,tag=('cg',idx)))
                out.append(dict(acc=AU[idx%2],c=accs(AU[idx%2]),a=('reg',36,lambda idx=idx: cst[('u',idx)]),b=28,tag=('cu',idx)))
            else:
                out.append(dict(acc=AG[0],c=accs(AG[0]),a=('reg',32,lambda: cst['g2']),b=28,tag=('cg',2)))
    out.append(dict(acc=AU[0],c=accs(AU[0]),a=('reg',36,lambda: cst['u2']),b=28,tag=('cu',2)))
    steps=out
    pos={st['tag']:i for i,st in enumerate(steps) if 'tag' in st}
    first_g1=[i for i,st in enumerate(steps) if st.get('acc')==AG[1] and st['c']=='0'][0]
    steps[first_g1]['need_fill']=nstat_fill
    first_g2=[i for i,st in enumerate(steps) if st.get('acc')==AG[0] and st['c']=='0'][1]
    for p in range(3):
        epilogue(p,pos[('cg',p)]+4,pos[('cu',p)]+4)
        if p==0: steps[first_g2]['need_fill']=len(fill)
    mfma_stream(S,steps,fill)
    stamp(S,16,48)
    bump(); set_flag()
    stamp(S,17,48)
    if cfg.stop_after==3:
        S("s_branch L_fin"); return S

    def mask4():
        S("s_lshl_b32 s57, s52, 1")
        S("s_add_u32 s57, s57, s50")
        S("s_mov_b32 s58, 0x11111111")
        S("s_lshl_b32 s58, s58, s57")
        S("s_lshl_b32 s59, 1, s57")
        S("s_cmp_eq_u32 s51, 0")
        S("s_cselect_b32 s64, s58, 0")
        S("s_cselect_b32 s65, s59, s58")
    S("s_mul_i32 s87, s51, 6144")
    kb=["K1","K2","K3","K4","K5"]
    def items4(s,t):
        g=s//8; sl=s%8
        pre=None
        if sl==0:
            if g<5: pre=setaddr2(5+t,22+2*g,extra_s=83)
            else: pre=setaddr2(5+t,32,add_s=87)
        bar = kb[g] if (sl==7 and g<5) else None
        return sl*2048,pre,bar
    gemm2("P4",43,75,HTILE,43*1024,73,mask4,items4,["Bh","K6"],None,None,True)
    Lfin=S.newlabel('Lfinal'); Ldone=S.newlabel('Lp4done')
    S("s_cmp_eq_u32 s48, 1")
    S(f"s_cbranch_scc1 {Lfin}")
    S(f"s_mov_b32 s76, {XB[2]}")
    S(f"s_mov_b32 s77, {STATS+2*SBUF}")
    out_tl(76,77)
    Lnh=S.newlabel('Lnohalo'); Lhd=S.newlabel('Lhalod')
    stamp(S,24,48)
    S("s_and_b32 s57, s52, s50")
    S("s_cmp_eq_u32 s57, 0")
    S(f"s_cbranch_scc1 {Lnh}")
    S("s_cmp_eq_u32 s21, 15")
    S(f"s_cbranch_scc1 {Lnh}")
    S("s_lshl_b32 s59, s53, 12")
    S("s_lshl_b32 s57, s51, 11")
    S("s_add_u32 s59, s59, s57")
    S(f"s_add_u32 s59, s59, {TEAMSZ+HALOX+32768}")
    S("buffer_store_dwordx4 v[16:19], v1, s[28:31], s59 offen sc1")
    S("buffer_store_dwordx4 v[20:23], v1, s[28:31], s59 offen offset:1024 sc1")
    S(f"s_add_u32 s59, s81, {TEAMSZ+HSTATS+4096}")
    S("buffer_store_dword v98, v10, s[28:31], s59 offen sc1")
    S.items.append(Ins("s_waitcnt vmcnt(3)"))
    S("s_add_u32 s57, s23, s49")
    S("s_add_u32 s57, s57, 1")
    S("v_mov_b32 v7, s57")
    S("s_mov_b64 exec, 1")
    S("buffer_store_dword v7, v4, s[32:35], 0 offen")
    S("buffer_store_dword v7, v4, s[36:39], 0 offen sc1")
    S.items.append(Ins("s_waitcnt vmcnt(2)"))
    S("s_lshl_b32 s57, s53, 3")
    S("s_lshl_b32 s58, s51, 2")
    S("s_add_u32 s57, s57, s58")
    S(f"s_add_u32 s57, s57, {TEAMSZ+HFLAGS+64}")
    S("v_mov_b32 v7, s57")
    S("s_add_u32 s57, s24, 1")
    S("v_mov_b32 v8, s57")
    S("buffer_store_dword v8, v7, s[28:31], 0 offen sc1")
    S("s_mov_b64 exec, -1")
    bump()
    S(f"s_branch {Lhd}")
    S.label(Lnh)
    bump(); set_flag()
    S.label(Lhd)
    stamp(S,25,48)
    if cfg.stop_after==4:
        S("s_branch L_fin"); return S
    S("s_mov_b32 s48, 1")
    S("s_branch L_layer")
    S.label(Lfin)
    S("s_nop 1")
    S("v_and_b32 v7, 31, v0")
    S("s_lshl_b32 s57, s98, 5")
    S("v_add_u32 v7, s57, v7")
    S("v_lshlrev_b32 v7, 10, v7")
    S("v_lshrrev_b32 v8, 5, v0")
    S("v_lshl_add_u32 v7, v8, 4, v7")
    S("s_lshl_b32 s57, s53, 7")
    S("s_lshl_b32 s58, s51, 6")
    S("s_add_u32 s57, s57, s58")
    S("buffer_store_dwordx4 v[16:19], v7, s[44:47], s57 offen")
    S("buffer_store_dwordx4 v[20:23], v7, s[44:47], s57 offen offset:32")
    S.force_wait(vm=True)
    stamp(S,26,48)
    S("s_or_b32 s57, s22, s20")
    S("s_cmp_lg_u32 s57, 0")
    S("s_cbranch_scc1 L_fin")
    S(f"v_mov_b32 v7, {EPOCH}")
    S("s_add_u32 s58, s23, 256")
    S("v_mov_b32 v8, s58")
    S("s_mov_b64 exec, 1")
    S("buffer_store_dword v8, v7, s[28:31], 0 offen")
    S("s_branch L_fin")
    return S

def gen_H():
    S=Stream('H')
    S.label("L_helper")
    S("s_nop 4")
    srd(S,32,6,7,512*1536*2)
    srd(S,36,8,9,512*512*2)
    srd(S,40,12,13,512*1376*2)
    srd(S,44,14,15,512*1376*2)
    srd(S,48,10,11,1376*512*2)
    S("s_sub_u32 s52, s20, 4")
    S("s_lshr_b32 s53, s22, 3")
    S("s_and_b32 s54, s22, 7")
    S("v_lshrrev_b32 v2, 2, v0")
    S("v_and_b32 v3, 3, v0")
    S("v_lshlrev_b32 v3, 4, v3")
    S("v_mul_u32_u24 v4, 3072, v2"); S("v_add_u32 v4, v4, v3")
    S("v_lshrrev_b32 v5, 3, v0"); S("v_lshlrev_b32 v5, 10, v5")
    S("v_bfe_u32 v8, v0, 4, 1"); S("v_lshlrev_b32 v8, 2, v8"); S("v_and_b32 v9, 7, v0"); S("v_xor_b32 v8, v8, v9")
    S("v_lshl_add_u32 v5, v8, 4, v5")
    S("v_mul_u32_u24 v6, 2752, v2"); S("v_add_u32 v6, v6, v3")
    S("s_lshl_b32 s55, s22, 6")
    S("s_lshl_b32 s56, s54, 7")
    S("s_lshl_b32 s57, s22, 3")
    S("s_mul_hi_u32 s57, s57, 0x55555556")
    S("s_lshl_b32 s57, s57, 6")
    S("s_mul_i32 s58, s52, 64*3072")
    S("s_mul_i32 s59, s52, 32*1024")
    S("s_mul_i32 s60, s52, 64*2752")
    S("s_lshl_b32 s61, s52, 12")
    S("v_add_u32 v3, s61, v1")
    if cfg.prof: S("s_mov_b32 s98, s92")
    hidx=[0]
    HN=[]
    def hs(name):
        if not (cfg.prof and cfg.prof_h): return
        hstamp(S,hidx[0]); HN.append(name); hidx[0]+=1
    S.hnames=HN
    itok={}
    win=[None]
    RREG={0:64,1:80,2:96,3:112,4:128,5:144,14:160,15:176,16:192,17:208,30:224,31:240} if cfg.retain else {}
    srd(S,84,16,17,2048*1024) if False else None
    def touch(soff_expr_lines, nkb, imm0=0, srdreg=28, vlane=1):
        if not cfg.pretouch: return
        for l in soff_expr_lines: S(l)
        for c in range(nkb):
            S(f"buffer_load_dword v8, v{vlane}, s[{srdreg}:{srdreg+3}], s62 offen offset:{(c%4)*1024}")
            if c%4==3 and c+1<nkb: S("s_add_u32 s62, s62, 4096")
    def warm_xcd(sr, nbytes, lo=0.0, hi=1.0):
        a=int(nbytes*lo)//1024; b=-(-int(nbytes*hi)//1024)
        per=-(-(b-a)//128)
        S("s_lshr_b32 s62, s2, 3"); S("s_lshl_b32 s62, s62, 2"); S("s_add_u32 s62, s62, s52")
        S(f"s_mul_i32 s62, s62, {per*1024}")
        S(f"s_add_u32 s62, s62, {a*1024}")
        for c in range(per):
            S(f"buffer_load_dword v8, v1, s[{sr}:{sr+3}], s62 offen offset:{(c%4)*1024}")
            if c%4==3 and c+1<per: S("s_add_u32 s62, s62, 4096")
    def warm_chip(sr, nbytes):
        kb=-(-nbytes//1024); per=-(-kb//1024)
        S("s_lshl_b32 s62, s2, 2"); S("s_add_u32 s62, s62, s52")
        S(f"s_mul_i32 s62, s62, {per*1024}")
        for c in range(per):
            S(f"buffer_load_dword v8, v1, s[{sr}:{sr+3}], s62 offen offset:{(c%4)*1024}")
    def touch_o_x1():
        touch(["s_lshl_b32 s62, s52, 15","s_lshl_b32 s63, s22, 11","s_add_u32 s62, s62, s63",f"s_add_u32 s62, s62, {OB[0]}"],2)
        touch_xs(XB[1],STATS+SBUF)
    def touch_xs(xb,sb):
        touch(["s_and_b32 s62, s52, 1","s_lshl_b32 s63, s53, 1","s_add_u32 s62, s62, s63","s_lshl_b32 s99, s62, 12","s_lshl_b32 s62, s62, 15",
               "s_lshl_b32 s63, s54, 12","s_add_u32 s62, s62, s63","s_lshr_b32 s63, s52, 1","s_lshl_b32 s63, s63, 11","s_add_u32 s62, s62, s63",
               f"s_add_u32 s62, s62, {xb}"],2)
        if cfg.pretouch:
            S("s_lshl_b32 s63, s54, 9"); S("s_add_u32 s62, s99, s63"); S(f"s_add_u32 s62, s62, {sb}")
            S("s_mov_b64 exec, 0xffffffff")
            S("buffer_load_dword v8, v1, s[28:31], s62 offen")
            S("s_mov_b64 exec, -1")
    def touch_out():
        if not cfg.pretouch: return
        S("s_add_u32 s84, s16, 0"); S("s_addc_u32 s85, s17, 0"); S(f"s_mov_b32 s86, {2048*1024}"); S("s_mov_b32 s87, 0x00020000")
        S("s_lshl_b32 s62, s21, 2"); S("s_lshl_b32 s63, s53, 1"); S("s_add_u32 s62, s62, s63"); S("s_and_b32 s63, s52, 1"); S("s_add_u32 s62, s62, s63")
        S("s_lshl_b32 s62, s62, 15")
        S("s_lshl_b32 s63, s54, 7"); S("s_add_u32 s62, s62, s63"); S("s_lshr_b32 s63, s52, 1"); S("s_lshl_b32 s63, s63, 6"); S("s_add_u32 s62, s62, s63")
        S("v_and_b32 v9, 31, v0"); S("v_lshlrev_b32 v9, 10, v9")
        S("buffer_load_dword v8, v9, s[84:87], s62 offen")
    def touch_h():
        touch([f"s_mul_i32 s62, s52, {HTILE}","s_lshl_b32 s63, s57, 5","s_add_u32 s62, s62, s63",f"s_add_u32 s62, s62, {HB[0]}"],6)
    def throttle():
        if win[0] is not None and S.vm_issued-S.vm_done>win[0]:
            S.wait(('vm',S.vm_issued-win[0]))
    def spec_of(i):
        if i<6:
            nm=['k','v','k','v','q','q'][i]; half=[0,0,1,1,0,1][i]
            col={'q':0,'k':1024,'v':2048}[nm]
            return (32,4,3072,55,col,256*half,58)
        elif i<10:
            return (36,5,512,56,0,256*(i-6),59)
        elif i<22:
            tbl={10:('g',0,0),11:('u',0,0),12:('g',0,1),13:('u',0,1),14:('g',1,0),15:('u',1,0),16:('g',1,1),17:('u',1,1),
                 18:('g',2,0),19:('g',2,1),20:('u',2,0),21:('u',2,1)}
            m,p,half=tbl[i]
            return (40 if m=='g' else 44,6,2752,57,64*p,256*half,60)
        return None
    def rload(i):
        r=RREG[i]
        if i<22:
            sr,vl,pitch,scol,colimm,row0,swave=spec_of(i)
            S(f"s_add_u32 s62, s{scol}, s{swave}")
            S(f"s_add_u32 s62, s62, {colimm+row0*pitch}")
        else:
            g=(i-22)//2; kh=(i-22)%2; row0=688*kh+128*g
            sr,vl,pitch=48,5,512
            S("s_add_u32 s62, s56, s59")
            S(f"s_add_u32 s62, s62, {row0*1024}")
        tok=None
        for c in range(4):
            if c>0: S(f"s_add_u32 s62, s62, {16*pitch}")
            tok=S(f"buffer_load_dwordx4 v[{r+4*c}:{r+4*c+3}], v{vl}, s[{sr}:{sr+3}], s62 offen{cfg.nt}"); throttle()
        itok[('r',i)]=tok
    def rput(n):
        L,i=divmod(n,NITEMS)
        base=(n*SLOT)&0x1ffff
        r=RREG[i]
        S.wait(itok[('r',i)])
        S(f"v_add_u32 v2, {base}, v3")
        tok=None
        for c in range(4):
            if S.lg_issued-S.lg_done>=14: S.wait(('lg',S.lg_issued-8))
            tok=S(f"ds_write_b128 v2, v[{r+4*c}:{r+4*c+3}] offset:{c*1024}")
        itok[n]=tok
    def dma(n):
        L,i=divmod(n,NITEMS)
        if i in RREG:
            if L==0 and ('r',i) not in itok: rload(i)
            rput(n); return
        base=(n*SLOT)&0x1ffff
        spec=spec_of(i)
        tok=None
        if spec:
            sr,vl,pitch,scol,colimm,row0,swave=spec
            S(f"s_add_u32 s62, s{scol}, s{swave}")
            S(f"s_add_u32 s62, s62, {colimm+row0*pitch}")
            S(f"s_add_u32 m0, s61, {base}")
            for c in range(4):
                if c>0:
                    S(f"s_add_u32 s62, s62, {16*pitch}")
                    S(f"s_add_u32 m0, m0, 1024")
                tok=S(f"buffer_load_dwordx4 v{vl}, s[{sr}:{sr+3}], s62 offen lds"); throttle()
        elif i<32:
            g=(i-22)//2; kh=(i-22)%2
            row0=688*kh+128*g
            S("s_add_u32 s62, s56, s59")
            S(f"s_add_u32 s62, s62, {row0*1024}")
            S(f"s_add_u32 m0, s61, {base}")
            for c in range(4):
                if c>0:
                    S(f"s_add_u32 s62, s62, {8*1024}")
                    S(f"s_add_u32 m0, m0, 1024")
                tok=S(f"buffer_load_dwordx4 v5, s[48:51], s62 offen lds"); throttle()
        else:
            S("s_lshr_b32 s63, s52, 1"); S(f"s_mul_i32 s63, s63, {688*1024}")
            S("s_and_b32 s62, s52, 1"); S(f"s_mul_i32 s62, s62, {24*1024}")
            S("s_add_u32 s62, s62, s63")
            S("s_add_u32 s62, s62, s56")
            S(f"s_add_u32 s62, s62, {640*1024}")
            S("s_mul_i32 s63, s52, 3072")
            S(f"s_add_u32 m0, s63, {base}")
            for c in range(3):
                if c>0:
                    S(f"s_add_u32 s62, s62, {8*1024}")
                    S(f"s_add_u32 m0, m0, 1024")
                tok=S(f"buffer_load_dwordx4 v5, s[48:51], s62 offen lds"); throttle()
        itok[n]=tok
    nlayers = 2 if cfg.stop_after>4 else 1
    last_item = NITEMS*nlayers-1
    done=set()
    def issue(*ns):
        for n in ns:
            if n<=last_item and n not in done:
                dma(n); done.add(n)
    S("v_lshrrev_b32 v7, 4, v0"); S("v_lshlrev_b32 v7, 9, v7")
    S("v_bfe_u32 v8, v0, 2, 2"); S("v_lshl_add_u32 v7, v8, 6, v7")
    S("v_and_b32 v8, 3, v0"); S("v_lshl_add_u32 v7, v8, 3, v7")
    S("s_and_b32 s64, s52, 1")
    S("s_lshl_b32 s65, s64, 5")
    S("v_add_u32 v7, s65, v7")
    for r in range(12,16): S(f"v_mov_b32 v{r}, 0x3f803f80")
    S("v_mov_b32 v8, 0"); S("v_mov_b32 v9, 0"); S(f"v_mov_b32 v10, {ZERO8}")
    if S.lg_issued-S.lg_done>=14: S.wait(lg_all=True)
    S("ds_write_b64 v10, v[8:9]")
    S("v_lshrrev_b32 v11, 4, v0"); S("v_lshlrev_b32 v11, 9, v11")
    S("v_and_b32 v8, 15, v0"); S("v_lshl_add_u32 v11, v8, 4, v11"); S("v_add_u32 v11, 256, v11")
    S("v_and_b32 v16, 15, v0"); S("v_lshlrev_b32 v16, 4, v16"); S("v_add_u32 v16, 256, v16")
    S("s_lshr_b32 s66, s52, 1")
    S("s_lshl_b32 s67, s66, 9")
    S("s_lshl_b32 s68, s64, 7")
    S("s_add_u32 s67, s67, s68")
    S(f"s_add_u32 s67, s67, {CST}")
    S("v_and_b32 v17, 15, v0"); S("v_lshlrev_b32 v17, 3, v17")
    S("v_bfe_u32 v8, v0, 4, 1"); S("v_lshl_add_u32 v17, v8, 8, v17")
    S("v_add_u32 v17, s67, v17")
    S(f"v_mov_b32 v8, {ZERO8}")
    S("v_cmp_gt_u32 vcc, 32, v0")
    S("v_cndmask_b32 v17, v8, v17, vcc")
    for r in (22,23,26,27): S(f"v_mov_b32 v{r}, 0")
    S("v_and_b32 v18, 15, v0"); S("v_lshlrev_b32 v18, 4, v18")
    S("v_bfe_u32 v8, v0, 4, 1")
    S("v_lshrrev_b32 v9, 5, v0")
    S("v_mul_u32_u24 v19, 2304, v8"); S("v_add_u32 v19, v19, v18"); S("v_lshl_add_u32 v19, v9, 3, v19")
    S("s_mul_i32 s68, s64, 4608"); S(f"s_add_u32 s68, s68, {KBUF}")
    S("v_add_u32 v19, s68, v19")
    S("v_mul_u32_u24 v28, 4608, v8"); S("v_add_u32 v28, v28, v18")
    S("v_mul_u32_u24 v9, 2304, v9"); S("v_add_u32 v28, v28, v9")
    S("s_mul_i32 s68, s64, 9216"); S(f"s_add_u32 s68, s68, {VBUF}")
    S("v_add_u32 v28, s68, v28")
    S.force_wait(lg=True)

    if cfg.earlywarm:
        warm_chip(32,512*1536*2)
    if cfg.tlbwarm:
        S("v_mov_b32 v2, 0")
        S("s_mov_b64 exec, 1")
        for sr in (40,44,48):
            S(f"buffer_load_dword v36, v2, s[{sr}:{sr+3}], 0 offen")
        S("s_mov_b64 exec, -1")
    S.barrier("S0")
    win[0]=cfg.win0
    def chip_others():
        for sr,nb in ((36,512*512*2),(40,512*1376*2),(44,512*1376*2),(48,1376*512*2)): warm_chip(sr,nb)
    def narrow():
        for i in (0,1): rload(i)
        issue(0,1)
        for i in (2,3): rload(i)
        issue(2,3)
        for i in (4,5): rload(i)
        issue(4,5)
    so=cfg.startord
    if so=='A':
        warm_xcd(32,512*1536*2,0.0,0.5); warm_xcd(32,512*1536*2,0.5,1.0); narrow(); chip_others()
    elif so=='B':
        narrow(); chip_others()
    elif so=='C':
        if not cfg.earlywarm: warm_chip(32,512*1536*2)
        narrow(); chip_others()
    elif so=='D':
        for i in range(6): rload(i)
        chip_others()
        issue(0,1,2,3,4,5)
    elif so=='E':
        warm_xcd(32,512*1536*2,0.0,0.5)
        for i in (0,1): rload(i)
        warm_xcd(32,512*1536*2,0.5,1.0)
        for i in (2,3,4,5): rload(i)
        chip_others()
        issue(0,1,2,3,4,5)
    if cfg.stop_after==0:
        S.force_wait(vm=True); S("s_branch L_fin"); return S
    def cs_finish(dreg):
        S(f"v_cvt_pk_bf16_f32 v30, v{dreg}, v{dreg}")
        S(f"v_lshlrev_b32 v30, 16, v30")
        S(f"v_sub_f32 v31, v{dreg}, v30")
        S(f"v_cvt_pk_bf16_f32 v32, v{dreg}, v31")
        S(f"v_and_b32 v30, 0xffff0000, v32")
        S(f"v_sub_f32 v31, v31, v30")
        S(f"v_cvt_pk_bf16_f32 v33, v31, 0")
        S("v_and_b32 v30, 15, v0"); S("v_lshlrev_b32 v30, 3, v30")
        S("v_add_u32 v30, s70, v30")
        S("s_mov_b64 exec, 0xffff")
        S("ds_write_b64 v30, v[32:33]")
        S("s_mov_b64 exec, -1")
    def tr16(dst, vaddr, off):
        S(f"ds_read_b64_tr_b16 v[{dst}:{dst+1}], v{vaddr} offset:{off}")
        return S(f"ds_read_b64_tr_b16 v[{dst+2}:{dst+3}], v{vaddr} offset:{off+256}")
    def cs_item(nA,nB,tileA,halfA,tileB,halfB):
        bA=(nA*SLOT)&0x1ffff; bB=(nB*SLOT)&0x1ffff
        S.wait(lg_all=True)
        S("s_cmp_lt_u32 s52, 2")
        csel(S,69,bA,bB)
        csel(S,70,CST+tileA*512+halfA*256,CST+tileB*512+halfB*256)
        S("s_lshl_b32 s71, s64, 7")
        S("s_add_u32 s70, s70, s71")
        S("v_add_u32 v29, s69, v7")
        tk=[]
        for sp in range(4): tk.append(tr16(36+4*sp,29,sp*2048))
        for sp in range(8):
            S.wait(tk[sp])
            r=36+4*(sp%4)
            S(f"v_mfma_f32_16x16x32_bf16 v[52:55], v[12:15], v[{r}:{r+3}], {'0' if sp==0 else 'v[52:55]'}")
            if sp+4<8: tk.append(tr16(r,29,(sp+4)*2048))
        cs_finish(52)

    for L in range(nlayers):
        n0=NITEMS*L
        def pub(*items):
            toks=[itok[n0+i] for i in items if (n0+i) in itok]
            S.wait(*toks)
        def bar(name, publish=(), items=None, lg=True, w=None, pre=None):
            pub(*publish)
            if lg: S.wait(lg_all=True)
            hs(f"L{L} {name} arrive")
            S.barrier(name)
            hs(f"L{L} {name} pass")
            if pre: pre()
            if items is not None:
                win[0]=(None if w=='none' else (w if w is not None else cfg.win))
                issue(*[n0+i for i in items])
                hs(f"L{L} {name} issued")
        AF = 160 if L==0 else 64
        BT = 224 if L==0 else 128
        ST = AF
        if L==0:
            S(f"s_mov_b32 s76, {HALOX}")
            S(f"s_mov_b32 s77, {HSTATS}")
        else:
            S("s_cmp_eq_u32 s21, 0")
            csel(S,76,HALOX,HALOX+32768)
            csel(S,77,HSTATS,HSTATS+4096)
        bar("Ba",publish=(0,1),lg=True)
        bar("Ba2",publish=(2,3,4,5),lg=True)
        lo0=((n0+0)*SLOT)&0x1ffff; lo1=((n0+1)*SLOT)&0x1ffff; hi0=((n0+2)*SLOT)&0x1ffff; hi1=((n0+3)*SLOT)&0x1ffff
        S("s_cmp_lt_u32 s52, 2")
        csel(S,69,lo0,lo1)
        csel(S,71,hi0,hi1)
        S("v_add_u32 v29, s69, v7")
        S("v_add_u32 v35, s71, v7")
        tk=[]
        for sp in range(16):
            if sp>=6: S.wait(tk[sp-6])
            tk.append(tr16(AF+4*sp,29 if sp<8 else 35,(sp%8)*2048))
            if L==0 and sp>=6:
                q=sp-6; a=52 if q<8 else 60
                S(f"v_mfma_f32_16x16x32_bf16 v[{a}:{a+3}], v[12:15], v[{AF+4*q}:{AF+4*q+3}], {'0' if q%8==0 else 'v[%d:%d]'%(a,a+3)}")
        S.wait(lg_all=True)
        if L==0:
            for q in range(10,16):
                a=60
                S(f"v_mfma_f32_16x16x32_bf16 v[{a}:{a+3}], v[12:15], v[{AF+4*q}:{AF+4*q+3}], v[{a}:{a+3}]")
            S("s_lshl_b32 s70, s66, 9"); S("s_lshl_b32 s71, s64, 7"); S("s_add_u32 s70, s70, s71"); S(f"s_add_u32 s70, s70, {CST}")
            cs_finish(52)
            S("s_add_u32 s70, s70, 256")
            cs_finish(60)
            cs_item(n0+4,n0+5,2,0,2,1)
            S.wait(lg_all=True)
        hs(f"L{L} A preread")
        def spoll(maxit, Lok, sleep):
            Lp=S.newlabel('Lhp')
            S("s_mov_b32 s79, 0")
            S.label(Lp)
            S.smem("s_load_dwordx16 s[80:95], s[72:73], 0 glc")
            S("s_add_u32 s79, s79, 1")
            S.force_wait(lg=True)
            for i in range(16): S(f"s_xor_b32 s{80+i}, s{80+i}, s75")
            for st_ in (8,4,2,1):
                for i in range(st_): S(f"s_or_b32 s{80+i}, s{80+i}, s{80+i+st_}")
            S("s_cmp_eq_u32 s80, 0")
            S(f"s_cbranch_scc1 {Lok}")
            if sleep: S(f"s_sleep {sleep}")
            S(f"s_cmp_lt_u32 s79, {maxit}")
            S(f"s_cbranch_scc1 {Lp}")
        def swarm():
            if not cfg.halowarm: return
            S("s_lshl_b32 s79, s22, 2"); S("s_add_u32 s79, s79, s52")
            S("s_lshl_b32 s79, s79, 9"); S("s_add_u32 s79, s79, s76"); S("s_add_u32 s79, s79, 256")
            S("s_add_u32 s82, s18, s79"); S("s_addc_u32 s83, s19, 0")
            for c in range(4): S.smem(f"s_load_dword s84, s[82:83], {c*64} glc")
            S("s_lshl_b32 s79, s22, 1"); S("s_and_b32 s74, s52, 1"); S("s_add_u32 s79, s79, s74")
            S("s_lshr_b32 s74, s79, 2"); S("s_lshl_b32 s74, s74, 9"); S("s_and_b32 s79, s79, 3"); S("s_lshl_b32 s79, s79, 6")
            S("s_add_u32 s79, s79, s74"); S("s_add_u32 s79, s79, s77"); S("s_add_u32 s79, s79, 256")
            S("s_add_u32 s86, s18, s79"); S("s_addc_u32 s87, s19, 0")
            S.smem("s_load_dword s85, s[86:87], 0 glc")
        S("s_add_u32 s75, s23, 1")
        S(f"s_mov_b32 s74, {PF0 if L==0 else HFLAGS+64}")
        S("s_add_u32 s72, s18, s74")
        S("s_addc_u32 s73, s19, 0")
        S("s_mov_b32 s78, 1")
        LokA=S.newlabel('LhokA'); LafterA=S.newlabel('LhafA')
        if L==1:
            S("s_cmp_eq_u32 s21, 0")
            S(f"s_cbranch_scc1 {LafterA}")
            if cfg.dbg_nohp: S(f"s_branch {LafterA}")
        spoll(cfg.hpollA,LokA,0)
        S("s_mov_b32 s78, 0")
        S(f"s_branch {LafterA}")
        S.label(LokA)
        swarm()
        S.label(LafterA)
        S("s_nop 1")
        hs(f"L{L} halo pollA")
        bar("Bb",lg=False)
        LokB=S.newlabel('LhokB'); LafterB=S.newlabel('LhafB')
        S("s_cmp_eq_u32 s78, 1")
        S(f"s_cbranch_scc1 {LafterB}")
        spoll(cfg.timeout,LokB,cfg.hsleep)
        S.label(LokB)
        swarm()
        S.label(LafterB)
        S.force_wait(lg=True)
        hs(f"L{L} halo flag")
        ht={}
        def hload(sp):
            if sp%2==0 and sp>0: S("s_add_u32 s76, s76, 4096")
            r=BT+4*(sp%8)
            ht[sp]=S(f"buffer_load_dwordx4 v[{r}:{r+3}], v11, s[28:31], s76 offen offset:{(sp%2)*2048} sc1")
        def ldstats():
            t=None
            for u in range(8):
                t=S(f"buffer_load_dwordx4 v[{ST+4*u}:{ST+3+4*u}], v16, s[28:31], s77 offen offset:{u*512} sc1")
            return t
        def dostats(t):
            S.wait(t)
            for c,tt_ in stats_to_frag(S, list(range(ST,ST+32)), (30,31,32,33), 20, out_rstd=34): S(tt_)
        for sp in range(8): hload(sp)
        for sp in range(16):
            S.wait(ht[sp])
            hb_=BT+4*(sp%8)
            S(f"v_mfma_f32_16x16x32_bf16 v[56:59], v[{AF+4*sp}:{AF+4*sp+3}], v[{hb_}:{hb_+3}], {'0' if sp==0 else 'v[56:59]'}")
            if sp+8<16: hload(sp+8)
            if sp==7:
                stt=ldstats()
                win[0]=None
                issue(*[n0+i for i in (6,7,8,9)])
        hs(f"L{L} halo mfma done")
        dostats(stt)
        ct=S("ds_read_b64 v[24:25], v17")
        S.wait(ct)
        S("v_mfma_f32_16x16x32_bf16 v[56:59], v[24:27], v[20:23], v[56:59]")
        for i in range(4): S(f"v_mul_f32 v{56+i}, v{56+i}, v34")
        Lv=S.newlabel('Lhv'); Ld=S.newlabel('Lhd')
        HALO_FIN=True
        S("s_cmp_ge_u32 s52, 2")
        S(f"s_cbranch_scc1 {Lv}")
        S("v_cvt_pk_bf16_f32 v30, v56, v57")
        S("v_cvt_pk_bf16_f32 v31, v58, v59")
        S("ds_write_b64 v19, v[30:31]")
        S(f"s_branch {Ld}")
        S.label(Lv)
        S("ds_write_b128 v28, v[56:59]")
        S.label(Ld)
        S.force_wait(lg=True)
        hs(f"L{L} halo written")
        def ld_r(*items):
            def f():
                win[0]=cfg.winL
                if L==0:
                    for i in items: rload(i)
            return f
        bar("Bc",items=(10,11),w='none',pre=touch_o_x1)
        ld_r(14,15,16,17)()
        if cfg.stop_after==1+4*L:
            S.force_wait(vm=True); S("s_branch L_fin"); return S
        bar("Bd",publish=(6,7,8,9))
        bar("Bd2",items=(12,13),w='none')
        bar("Be",items=(14,15,16,17))
        if cfg.stop_after==2+4*L:
            S.force_wait(vm=True); S("s_branch L_fin"); return S
        bar("Bf",publish=(10,11,12,13))
        if L==0: cs_item(n0+10,n0+11,3,0,4,0)
        bar("G1",publish=(14,15),items=(18,19),w=cfg.winL,pre=touch_h)
        if L==0: cs_item(n0+12,n0+13,3,1,4,1)
        bar("G2",publish=(16,17),items=(20,21),w=cfg.winL)
        if L==0: cs_item(n0+14,n0+15,5,0,6,0)
        bar("G3",publish=(18,19),items=(22,23),w=cfg.winL)
        if L==0: cs_item(n0+16,n0+17,5,1,6,1)
        bar("G4",publish=(20,21),items=(24,25),w=cfg.winL)
        ld_r(30,31)()
        if L==0: cs_item(n0+18,n0+19,7,0,7,1)
        bar("G5",items=(26,27),w=cfg.winL)
        if cfg.warmP3 and L==0: warm_xcd(36,512*512*2)
        if L==0: cs_item(n0+20,n0+21,8,0,8,1)
        bar("G6",items=(28,29),w=cfg.winL)
        if cfg.stop_after==3+4*L:
            S.force_wait(vm=True); S("s_branch L_fin"); return S
        bar("Bh",publish=(22,23,24,25))
        bar("K1",publish=(26,27),items=(30,31))
        bar("K2",publish=(28,29),items=(32,33))
        bar("K3",publish=(30,31),items=(34,35),pre=(lambda: touch_xs(XB[2],STATS+2*SBUF)) if L==0 else touch_out)
        bar("K4",publish=(32,),items=(36,37))
        bar("K5",items=(38,39))
        bar("K6",items=(40,))
        if cfg.stop_after==4+4*L:
            S.force_wait(vm=True); S("s_branch L_fin"); return S
    S("s_branch L_fin")
    return S

def build():
    P=gen_prologue(); C=gen_C(); H=gen_H()
    global HNAMES
    HNAMES=getattr(H,'hnames',[])
    nl = 2 if cfg.stop_after>4 else 1
    cb=C.barriers; hb=H.barriers
    assert cb[0]=="S0" and hb[0]=="S0"
    cb=cb[1:]; hb=hb[1:]
    if cfg.stop_after>=4:
        exp=cb*nl
        if cfg.stop_after in (5,6,7):
            pass
        else:
            assert hb==exp, (hb,exp)
    else:
        assert hb==cb, (hb,cb)
    hdr=open(os.path.join(os.path.dirname(os.path.abspath(__file__)),'header.txt')).read().rstrip('\n')
    txt=hdr+f"\n; @launch grid=(256,1,1) block=(512,1,1) lds={LDS_BYTES}\n"
    txt+='.amdgcn_target "amdgcn-amd-amdhsa--gfx950"\n.text\n'
    txt+=f".globl {KNAME}\n.p2align 8\n.type {KNAME},@function\n{KNAME}:\n"
    txt+=P.render()+"\n"+C.render()+"\n"+H.render()+"\n"
    txt+="L_fin:\n    s_waitcnt vmcnt(0) lgkmcnt(0)\nL_end:\n    s_endpgm\nL_codeend:\n"
    txt+=".set CODE_LAST, (L_codeend - L_pc - 16) & 0xfffffff0\n" if cfg.codepf else ""
    txt+=f""".section .rodata,"a"
.p2align 6
.amdhsa_kernel {KNAME}
  .amdhsa_next_free_vgpr 256
  .amdhsa_next_free_sgpr 100
  .amdhsa_accum_offset 256
  .amdhsa_group_segment_fixed_size 0
  .amdhsa_kernarg_size 80
  .amdhsa_user_sgpr_count 2
  .amdhsa_user_sgpr_kernarg_segment_ptr 1
  .amdhsa_system_sgpr_workgroup_id_x 1
.end_amdhsa_kernel
"""
    return txt

if __name__=="__main__":
    import argparse
    ap=argparse.ArgumentParser()
    ap.add_argument('--stop',type=int,default=99)
    ap.add_argument('--prof',action='store_true')
    ap.add_argument('-o',default='interleave_layers__sliding_local_dilated__geglu_ffn__prompt.s')
    a=ap.parse_args()
    cfg.stop_after=a.stop
    cfg.prof=a.prof
    open(a.o,'w').write(build())
    print("wrote",a.o)
```

```python
import sys, os
sys.path.insert(0, os.path.dirname(os.path.abspath(__file__)))
from core import *

KNAME = "interleave_layers__sliding_local_dilated__geglu_ffn__prompt_kernel"

TEAMSZ=0x200000
FLAGS=0x0000; IDS=0x0100; HFLAGS=0x0200; EPOCH=0x0300; PF0=0x0400
STATS=0x1000
SBUF=0
HSTATS=0x11000
HALOX=0x18000
XB=[0x30000,0x30000,0x30000,0x30000]
OB=[0xB0000,0xB0000]
HB=[0xF0000,0xF0000]
WS_USED=2*TEAMSZ
TILE=32768; HTILE=172*512
RING=0; SLOT=16384; NSLOT=8
SCR=131072
KBUF=SCR; VBUF=SCR+9216
CST=158720
MISC=163328
LDS_BYTES=163840
ZERO8=MISC+16

C_GELU=-2.0*0.7978845608028654*1.4426950408889634
def f2u(x):
    import struct
    return struct.unpack('<I',struct.pack('<f',x))[0]
def hexf(x): return "0x%08x"%f2u(x)

PROF=0x1A0000
class Cfg:
    prof = False
    prof_bar = True
    realtime = False
    stop_after = 99
    LA = 5
    NA = 6
    budget = 3.0
    timeout = 1<<18
    pv = 26
    retain = True
    codepf = True
    dbg_noepi = False
    pairwait = True
    ntact = ''
    earlywarm = True
    startord = 'F'
    bd2 = 11
    warmP3 = True
    p0fast = False
    ba2 = 20
    prof_kv = False
    prof_h = False
    warmstart = True
    hpollA = 1
    bx = 44
    dbg_delay = 0
    dbg_nohp = False
    dbg_nohl = False
    hsleep = 8
    csleep = 0
    pretouch = True
    tlbwarm = True
    halowarm = True
    s0 = 'mid'
    nt = ''
    winE = 3
    win = 3
    winL = 16
    win0 = 4
    warm = True
    PF = 6
    PF2 = 6
    PF2MAX = 28

cfg=Cfg()

def srd(S, r, lo, hi, size):
    S(f"s_mov_b32 s{r}, s{lo}")
    S(f"s_mov_b32 s{r+1}, s{hi}")
    S(f"s_mov_b32 s{r+2}, {size}")
    S(f"s_mov_b32 s{r+3}, 0x00020000")

def csel(S, dst, a, b):
    S(f"s_mov_b32 s{dst}, {a}")
    S(f"s_cselect_b32 s{dst}, s{dst}, {b}")

def mov64(S, r, val):
    S(f"s_mov_b32 s{r}, 0x{val & 0xffffffff:08x}")
    S(f"s_mov_b32 s{r+1}, 0x{(val>>32) & 0xffffffff:08x}")

def stamp(S, idx, layer_s=None, pv=None, real=False):
    if not cfg.prof: return
    pv = cfg.pv if pv is None else pv
    S.smem("s_memrealtime s[90:91]" if (real or cfg.realtime) else "s_memtime s[90:91]")
    S.force_wait(lg=True)
    if layer_s is not None:
        S(f"s_lshl_b32 s93, s{layer_s}, 8")
        S(f"s_add_u32 s93, s93, s92")
        S(f"s_add_u32 s93, s93, {idx*4}")
    else:
        S(f"s_add_u32 s93, s92, {idx*4}")
    S("s_mov_b64 exec, 1")
    S(f"v_mov_b32 v{pv}, s90")
    S(f"v_mov_b32 v{pv+1}, s93")
    S(f"buffer_store_dword v{pv}, v{pv+1}, s[28:31], 0 offen")
    S("s_mov_b64 exec, -1")

def hstamp(S, idx):
    if not cfg.prof: return
    S.smem("s_memtime s[96:97]")
    S.force_wait(lg=True)
    S(f"s_add_u32 s99, s98, {idx*4}")
    S("s_mov_b64 exec, 1")
    S("v_mov_b32 v30, s96")
    S("v_mov_b32 v31, s99")
    S("buffer_store_dword v30, v31, s[28:31], 0 offen")
    S("s_mov_b64 exec, -1")

def poll(S, voff, vtmp, srdreg, s_expect, s_mask, s_cnt, s_tmp, span=16):
    L=S.newlabel('Lpoll'); D=S.newlabel('Lpdone')
    S(f"s_mov_b32 s{s_cnt}, 0")
    S.label(L)
    S(f"buffer_load_dword v{vtmp}, v{voff}, s[{srdreg}:{srdreg+3}], 0 offen sc1")
    S(f"s_add_u32 s{s_cnt}, s{s_cnt}, 1")
    S.force_wait(vm=True)
    S(f"v_subrev_u32 v{vtmp}, s{s_expect}, v{vtmp}")
    S(f"v_cmp_gt_u32 vcc, {span}, v{vtmp}")
    S(f"s_and_b64 s[{s_tmp}:{s_tmp+1}], vcc, s[{s_mask}:{s_mask+1}]")
    S(f"s_cmp_eq_u64 s[{s_tmp}:{s_tmp+1}], s[{s_mask}:{s_mask+1}]")
    S(f"s_cbranch_scc1 {D}")
    if cfg.csleep: S(f"s_sleep {cfg.csleep}")
    S(f"s_cmp_lt_u32 s{s_cnt}, {cfg.timeout}")
    S(f"s_cbranch_scc1 {L}")
    S.label(D)
    S("s_nop 1")

def stats_to_frag(S_emit, st, vt, nm, out_rstd=None, gelu=None, s_c=None):
    ops=[]
    a=lambda t,c=1: ops.append((c,t))
    idx_s=[st[2*i] for i in range(16)]; idx_q=[st[2*i+1] for i in range(16)]
    for arr in (idx_s, idx_q):
        n=16
        cur=list(arr)
        while len(cur)>1:
            nxt=[]
            for i in range(0,len(cur),2):
                a(f"v_add_f32 v{cur[i]}, v{cur[i]}, v{cur[i+1]}")
                nxt.append(cur[i])
            cur=nxt
    s=idx_s[0]; q=idx_q[0]
    t0,t1,t2,t3=vt
    a(f"v_mul_f32 v{t0}, {hexf(1/512)}, v{s}")
    a(f"v_mul_f32 v{t1}, {hexf(1/512)}, v{q}")
    a(f"v_fma_f32 v{t1}, -v{t0}, v{t0}, v{t1}")
    a(f"v_max_f32 v{t1}, 0, v{t1}")
    a(f"v_cvt_pk_bf16_f32 v{t2}, v{t0}, v{t0}")
    a(f"v_cvt_pk_bf16_f32 v{t1}, v{t1}, v{t1}")
    a(f"v_xor_b32 v{nm}, 0x80008000, v{t2}")
    a(f"v_and_b32 v{t1}, 0xffff0000, v{t1}")
    a(f"v_and_b32 v{nm+1}, 0xffff, v{nm}")
    a(f"v_add_f32 v{t1}, {hexf(1e-5)}, v{t1}")
    a(f"v_cvt_pk_bf16_f32 v{t1}, v{t1}, v{t1}")
    a(f"v_and_b32 v{t1}, 0xffff0000, v{t1}")
    a(f"v_sqrt_f32 v{t1}, v{t1}",2)
    a(f"v_cvt_pk_bf16_f32 v{t1}, v{t1}, v{t1}")
    a(f"v_and_b32 v{t1}, 0xffff0000, v{t1}")
    if gelu is None:
        a(f"v_rcp_f32 v{out_rstd}, v{t1}",2)
    else:
        A,B,inv=gelu
        a(f"v_rcp_f32 v{t0}, v{t1}",2)
        a(f"v_mul_f32 v{inv}, v{t1}, v{t1}")
        a(f"v_mul_f32 v{A}, {hexf(C_GELU)}, v{t0}")
        a(f"v_mul_f32 v{t2}, v{t0}, v{t0}")
        a(f"v_mul_f32 v{t2}, {hexf(0.044715)}, v{t2}")
        a(f"v_mul_f32 v{B}, v{A}, v{t2}")
    return ops

def mfma_stream(S, steps, fillers, ring_base=40):
    LA=cfg.LA; NA=cfg.NA
    n=len(steps)
    atok=[None]*n; areg=[None]*n
    ringi=[0]
    def issue_reads(i):
        st=steps[i]
        if st.get('pre_reads'): st['pre_reads'](S)
        a=st['a']
        if a[0]=='tr':
            r=ring_base+4*(ringi[0]%NA); ringi[0]+=1
            S(f"ds_read_b64_tr_b16 v[{r}:{r+1}], v{a[1]} offset:{a[2]}")
            atok[i]=S(f"ds_read_b64_tr_b16 v[{r+2}:{r+3}], v{a[1]} offset:{a[2]+st.get('a2',256)}")
            areg[i]=r
        else:
            areg[i]=a[1]
    fi=[0]
    def emit_fill(i, budget):
        used=0
        while fi[0]<len(fillers):
            ms,cost,f=fillers[fi[0]]
            if ms>i: break
            if used+cost>budget+1e-9 and used>0: break
            if used>=budget: break
            if callable(f): f(S)
            else: S(f)
            used+=cost; fi[0]+=1
    for i in range(min(LA,n)): issue_reads(i)
    for i in range(n):
        st=steps[i]
        if st.get('need_fill') is not None:
            while fi[0]<st['need_fill']:
                ms,cost,f=fillers[fi[0]]
                if callable(f): f(S)
                else: S(f)
                fi[0]+=1
        toks=[atok[i]]
        if cfg.pairwait and i%2==0 and i+1<n and atok[i+1] is not None: toks.append(atok[i+1])
        if st['a'][0]=='reg' and st['a'][2] is not None: toks.append(st['a'][2]())
        if st.get('btok'): toks.append(st['btok']())
        S.wait(*toks)
        shape='32x32x16' if st.get('shape',32)==32 else '16x16x32'
        nacc=16 if shape=='32x32x16' else 4
        S(f"v_mfma_f32_{shape}_bf16 v[{st['acc']}:{st['acc']+nacc-1}], v[{areg[i]}:{areg[i]+3}], v[{st['b']}:{st['b']+3}], {st['c']}")
        if i+LA<n: issue_reads(i+LA)
        b=cfg.budget
        if st.get('post'):
            st['post'](S); b-=st.get('postcost',1)
        if st.get('after'): st['after'](S); b-=1
        emit_fill(i,b)
    while fi[0]<len(fillers):
        ms,cost,f=fillers[fi[0]]
        if callable(f): f(S)
        else: S(f)
        fi[0]+=1

PBAR={'G1':32,'G2':34,'G3':36,'G4':38,'G5':40,'G6':42,'K1':44,'K2':46,'K3':48,'K4':50,'K5':52,'Bb':54,'Bx':56}
def pbar(S,name):
    if cfg.prof and cfg.prof_bar:
        stamp(S,PBAR[name],48); S.barrier(name); stamp(S,PBAR[name]+1,48)
    else:
        S.barrier(name)

def accs(base): return f"v[{base}:{base+15}]"

def gen_prologue():
    S=Stream('P')
    S("s_cmp_ge_u32 s2, 256")
    S("s_cbranch_scc1 L_end")
    S.smem("""s_load_dwordx4 s[4:7], s[0:1], 0
s_load_dwordx2 s[8:9], s[0:1], 16
s_load_dwordx4 s[12:15], s[0:1], 32
s_load_dwordx2 s[10:11], s[0:1], 48
s_load_dwordx2 s[16:17], s[0:1], 56
s_load_dwordx2 s[18:19], s[0:1], 72""")
    S("v_lshrrev_b32 v1, 6, v0")
    S("v_and_b32 v0, 63, v0")
    S("v_readfirstlane_b32 s20, v1")
    S("s_and_b32 s25, s2, 7")
    S("s_lshr_b32 s26, s2, 3")
    S("s_lshr_b32 s27, s26, 4")
    S("s_lshl_b32 s21, s25, 1")
    S("s_add_u32 s21, s21, s27")
    S("s_and_b32 s22, s26, 15")
    S("s_lshl_b32 s25, s21, 21")
    S.items.append(Ins("s_waitcnt lgkmcnt(0)"))
    S("s_add_u32 s18, s18, s25")
    S("s_addc_u32 s19, s19, 0")
    S(f"s_mov_b32 s25, {EPOCH}")
    S(f"s_mov_b32 s26, {EPOCH+TEAMSZ}")
    S.smem("""s_load_dword s23, s[18:19], s25
s_load_dword s24, s[18:19], s26""")
    srd(S,28,18,19,WS_USED)
    if cfg.prof:
        S('s_lshl_b32 s92, s22, 3'); S('s_add_u32 s92, s92, s20'); S('s_lshl_b32 s92, s92, 9'); S(f's_add_u32 s92, s92, {PROF}')
    S("v_lshlrev_b32 v1, 4, v0")
    if cfg.codepf:
        S("s_getpc_b64 s[96:97]")
        S.label("L_pc")
        S("s_lshr_b32 s25, s2, 3")
        S("s_lshl_b32 s25, s25, 3")
        S("s_add_u32 s25, s25, s20")
        S("s_and_b32 s25, s25, 63")
        S("s_lshl_b32 s25, s25, 10")
        S("v_add_u32 v2, s25, v1")
        S("v_min_u32 v2, CODE_LAST, v2")
        S("global_load_dwordx4 v[252:255], v2, s[96:97]")
    S("s_cmp_ge_u32 s20, 4")
    S("s_cbranch_scc1 L_helper")
    return S

NITEMS=33
def slot_imm(i):
    return (i*SLOT)

def gen_C():
    S=Stream('C')
    S("s_nop 4")
    S("s_setprio 2")
    srd(S,40,4,5,2048*1024)
    srd(S,44,16,17,2048*1024)
    srd(S,32,18,19,0)
    srd(S,36,18,19,WS_USED)
    S("s_and_b32 s50, s20, 1")
    S("s_lshr_b32 s51, s20, 1")
    S("s_lshr_b32 s52, s22, 3")
    S("s_and_b32 s53, s22, 7")
    S("s_mov_b32 s54, s20")
    S("s_lshl_b32 s55, s52, 1")
    S("s_add_u32 s55, s55, s50")
    S("s_lshl_b32 s98, s21, 2")
    S("s_add_u32 s98, s98, s55")
    S("v_lshrrev_b32 v2, 5, v0")
    S("v_lshlrev_b32 v2, 9, v2")
    S("v_and_b32 v7, 15, v0")
    S("v_lshrrev_b32 v7, 2, v7")
    S("v_lshl_add_u32 v2, v7, 6, v2")
    S("v_bfe_u32 v7, v0, 4, 1")
    S("v_lshl_add_u32 v2, v7, 5, v2")
    S("v_and_b32 v7, 3, v0")
    S("v_lshl_add_u32 v2, v7, 3, v2")
    S(f"s_mov_b32 s57, {FLAGS}")
    S("v_lshlrev_b32 v3, 2, v0")
    S("v_add_u32 v3, s57, v3")
    S("s_lshl_b32 s58, s22, 4")
    S("s_lshl_b32 s59, s20, 2")
    S("s_add_u32 s58, s58, s59")
    S("s_add_u32 s58, s58, s57")
    S("v_mov_b32 v4, s58")
    for r in (30,31,34,35,38,39): S(f"v_mov_b32 v{r}, 0")
    stamp(S,0)
    if cfg.tlbwarm:
        S("v_mov_b32 v8, 0")
        S("s_mov_b64 exec, 1")
        S("buffer_load_dword v120, v8, s[44:47], 0 offen")
        S(f"buffer_load_dword v121, v8, s[28:31], 0 offen offset:{0x800}")
        S("s_mov_b64 exec, -1")
    S("v_lshrrev_b32 v8, 2, v0")
    S("v_and_b32 v9, 3, v0")
    S("s_lshl_b32 s57, s22, 6")
    S("v_lshlrev_b32 v10, 4, v9")
    S("v_add_u32 v10, s57, v10")
    S("s_lshl_b32 s57, s21, 7")
    S("s_lshl_b32 s58, s20, 5")
    S("s_add_u32 s58, s58, s57")
    S("v_add_u32 v11, s58, v8")
    S("v_lshl_add_u32 v11, v11, 10, v10")
    tA=S("buffer_load_dwordx4 v[16:19], v11, s[40:43], 0 offen")
    S("v_add_u32 v12, 0x4000, v11")
    tB=S("buffer_load_dwordx4 v[20:23], v12, s[40:43], 0 offen")
    S("s_sub_i32 s59, s57, 16")
    S("v_add_u32 v12, s59, v8")
    S("v_max_i32 v12, 0, v12")
    S("v_lshl_add_u32 v12, v12, 10, v10")
    tH=S("buffer_load_dwordx4 v[24:27], v12, s[40:43], 0 offen")
    if cfg.p0fast:
        S("s_lshl_b32 s57, s54, 15"); S("s_lshl_b32 s58, s22, 11"); S("s_add_u32 s57, s57, s58")
        S(f"s_add_u32 s59, s58, {HALOX}"); S(f"s_add_u32 s57, s57, {XB[0]}")
        S("buffer_load_dword v100, v1, s[28:31], s57 offen"); S("buffer_load_dword v100, v1, s[28:31], s57 offen offset:1024")
        S("buffer_load_dword v100, v1, s[28:31], s59 offen"); S("buffer_load_dword v100, v1, s[28:31], s59 offen offset:1024")
        S("s_lshr_b32 s60, s22, 1"); S("s_lshl_b32 s60, s60, 9")
        S("s_lshl_b32 s57, s54, 12"); S("s_add_u32 s57, s57, s60"); S(f"s_add_u32 s57, s57, {STATS}"); S(f"s_add_u32 s59, s60, {HSTATS}")
        S("s_mov_b64 exec, 0xffffffff")
        S("buffer_load_dword v100, v1, s[28:31], s57 offen"); tH=S("buffer_load_dword v100, v1, s[28:31], s59 offen")
        S("s_mov_b64 exec, -1")
    S.items.append(Ins("s_waitcnt lgkmcnt(0)"))
    stamp(S,56,pv=102)
    S("s_getreg_b32 s60, hwreg(HW_REG_XCC_ID)")
    S("s_and_b32 s60, s60, 7")
    S("s_add_u32 s60, s60, s23")
    S("s_add_u32 s89, s60, 16")
    S(f"s_mov_b32 s57, {IDS}")
    S("s_lshl_b32 s58, s22, 2")
    S("s_add_u32 s58, s58, s57")
    S("v_mov_b32 v14, s58")
    S("v_mov_b32 v15, s89")
    S("s_mov_b64 exec, 1")
    S("buffer_store_dword v15, v14, s[28:31], 0 offen sc1")
    S("s_mov_b64 exec, -1")
    if cfg.s0=='early': S.barrier("S0")
    S.wait(tH)
    stamp(S,57,pv=102)
    if cfg.p0fast:
        S(f"s_mov_b32 s57, {IDS}")
        S("v_lshlrev_b32 v101, 2, v0")
        S("v_add_u32 v101, s57, v101")
        tid=S("buffer_load_dword v103, v101, s[28:31], 0 offen sc1")
    S("v_mov_b32 v7, 0x3f803f80")
    outs=[]
    for gi,(base) in enumerate((16,20,24)):
        sm=64+2*gi; sq=65+2*gi
        S(f"v_dot2_f32_bf16 v{sm}, v{base}, v7, 0")
        S(f"v_dot2_f32_bf16 v{sq}, v{base}, v{base}, 0")
        for d in range(1,4):
            S(f"v_dot2_f32_bf16 v{sm}, v{base+d}, v7, v{sm}")
            S(f"v_dot2_f32_bf16 v{sq}, v{base+d}, v{base+d}, v{sq}")
    for qp in ("[1,0,3,2]","[2,3,0,1]"):
        for r in range(64,70):
            S(f"v_add_f32_dpp v{r}, v{r}, v{r} quad_perm:{qp} row_mask:0xf bank_mask:0xf")
    mov64(S,66,0x2222222222222222)
    for gi in range(3):
        S(f"v_cndmask_b32 v{72+gi}, v{64+2*gi}, v{65+2*gi}, s[66:67]")
    if cfg.p0fast:
        S.wait(tid)
        mov64(S,64,0xFFFF)
        S("v_cmp_eq_u32 vcc, s89, v103")
        S("s_and_b64 s[66:67], vcc, s[64:65]")
        S("s_cmp_eq_u64 s[66:67], s[64:65]")
        S(f"s_cselect_b32 s34, {WS_USED}, 0")
        S(f"s_cselect_b32 s38, 0, {WS_USED}")
        if os.environ.get('FORCE_SLOW'):
            S("s_mov_b32 s34, 0"); S(f"s_mov_b32 s38, {WS_USED}")
    S("v_lshlrev_b32 v12, 9, v9")
    S("v_lshl_add_u32 v12, v8, 4, v12")
    S("v_lshlrev_b32 v13, 2, v9")
    S("v_lshl_add_u32 v13, v8, 4, v13")
    S("s_lshl_b32 s57, s54, 15")
    S("s_lshl_b32 s58, s22, 11")
    S("s_add_u32 s57, s57, s58")
    S(f"s_add_u32 s57, s57, {XB[0]}")
    S(f"s_add_u32 s59, s58, {HALOX}")
    def st2(data, voff, soff, imm, w='x4'):
        S(f"buffer_store_dword{w} {data}, v{voff}, s[32:35], s{soff} offen offset:{imm}")
        S(f"buffer_store_dword{w} {data}, v{voff}, s[36:39], s{soff} offen offset:{imm} sc1")
    def st1(data, voff, soff, imm, w='x4'):
        S(f"buffer_store_dword{w} {data}, v{voff}, s[28:31], s{soff} offen offset:{imm} sc1")
    stP=st2 if cfg.p0fast else st1
    stP("v[16:19]",12,57,0); stP("v[20:23]",12,57,256); stP("v[24:27]",12,59,256)
    S("s_lshr_b32 s60, s22, 1")
    S("s_lshl_b32 s60, s60, 9")
    S("s_and_b32 s61, s22, 1")
    S("s_lshl_b32 s61, s61, 3")
    S("s_add_u32 s60, s60, s61")
    S("s_lshl_b32 s57, s54, 12")
    S("s_add_u32 s57, s57, s60")
    S(f"s_add_u32 s57, s57, {STATS}")
    S(f"s_add_u32 s59, s60, {HSTATS}")
    mov64(S,66,0x3333333333333333)
    S("s_mov_b64 exec, s[66:67]")
    stP("v72",13,57,0,''); stP("v73",13,57,256,''); stP("v74",13,59,256,'')
    S("s_mov_b64 exec, -1")
    stamp(S,58,pv=102)
    S("s_mov_b32 s49, 1")
    def set_flag():
        S.force_wait(vm=True)
        S("s_add_u32 s57, s23, s49")
        S("v_mov_b32 v7, s57")
        S("s_mov_b64 exec, 1")
        S("buffer_store_dword v7, v4, s[32:35], 0 offen")
        S("buffer_store_dword v7, v4, s[36:39], 0 offen sc1")
        S("s_mov_b64 exec, -1")
    if cfg.s0=='mid': S.barrier("S0")
    S.force_wait(vm=True)
    S("s_add_u32 s57, s23, s49")
    S("v_mov_b32 v7, s57")
    S("s_lshl_b32 s57, s20, 6")
    S("s_lshl_b32 s58, s22, 2")
    S("s_add_u32 s57, s57, s58")
    S(f"s_add_u32 s57, s57, {PF0}")
    S("v_mov_b32 v8, s57")
    S("s_mov_b64 exec, 1")
    if cfg.p0fast:
        S("buffer_store_dword v7, v8, s[32:35], 0 offen")
        S("buffer_store_dword v7, v8, s[36:39], 0 offen sc1")
    else:
        S("buffer_store_dword v7, v8, s[28:31], 0 offen sc1")
    S("s_mov_b64 exec, -1")
    if cfg.s0=='late': S.barrier("S0")
    stamp(S,1)
    if cfg.stop_after==0:
        S("s_branch L_fin"); return S
    S("s_mov_b32 s94, 0")
    S("s_mov_b32 s48, 0")
    S.label("L_layer")
    S("s_nop 4")
    S.vm_done=S.vm_issued; S.lg_done=S.lg_issued
    S.force_wait(vm=True,lg=True)
    S("s_lshl_b32 s56, s48, 14")
    def layer_offsets():
        S("s_cmp_eq_u32 s48, 0")
        csel(S,70,XB[0],XB[2])
        csel(S,71,STATS,STATS+2*SBUF)
        csel(S,72,OB[0],OB[1])
        csel(S,73,XB[1],XB[3])
        csel(S,74,STATS+SBUF,STATS+SBUF)
        csel(S,75,HB[0],HB[1])
    def slot(dst_s, i, extra_s=None, extra_imm=0):
        S(f"s_add_u32 s{dst_s}, s56, {i*SLOT}")
        if extra_s is not None: S(f"s_add_u32 s{dst_s}, s{dst_s}, s{extra_s}")
        S(f"s_and_b32 s{dst_s}, s{dst_s}, 0x1ffff")
        if extra_imm: S(f"s_add_u32 s{dst_s}, s{dst_s}, {extra_imm}")
    def setaddr(vreg, i, extra_s=None, add_s=None):
        def f(S):
            slot(57,i,extra_s)
            if add_s is not None: S(f"s_add_u32 s57, s57, s{add_s}")
            S(f"v_add_u32 v{vreg}, s57, v2")
        return f
    def setaddr2(vreg, i, extra_s=None, add_s=None):
        def f(S):
            slot(57,i,extra_s)
            if add_s is not None: S(f"s_add_u32 s57, s57, s{add_s}")
            S(f"v_add_u32 v{vreg}, s57, v{12 if vreg==5 else 13}")
        return f
    def expect():
        S("s_add_u32 s68, s23, s49")
    def bump(): S("s_add_u32 s49, s49, 1")

    Lv1=S.newlabel('Lp1v'); Ld1=S.newlabel('Lp1d'); Lsp=S.newlabel('Lp1s')
    S("s_cmp_eq_u32 s48, 0")
    S(f"s_cbranch_scc0 {Lv1}")
    S("s_lshl_b32 s57, s20, 6")
    S(f"s_add_u32 s57, s57, {PF0}")
    S("s_add_u32 s66, s18, s57")
    S("s_addc_u32 s67, s19, 0")
    S("s_add_u32 s68, s23, 1")
    S("s_mov_b32 s69, 0")
    S.label(Lsp)
    S.smem("s_load_dwordx16 s[72:87], s[66:67], 0 glc")
    S("s_add_u32 s69, s69, 1")
    S.items.append(Ins("s_waitcnt lgkmcnt(0)"))
    for i in range(16): S(f"s_xor_b32 s{72+i}, s{72+i}, s68")
    for st_ in (8,4,2,1):
        for i in range(st_): S(f"s_or_b32 s{72+i}, s{72+i}, s{72+i+st_}")
    S("s_cmp_eq_u32 s72, 0")
    S(f"s_cbranch_scc1 {Ld1}")
    S("s_sleep 2")
    S(f"s_cmp_lt_u32 s69, {cfg.timeout}")
    S(f"s_cbranch_scc1 {Lsp}")
    S(f"s_branch {Ld1}")
    S.label(Lv1)
    S("s_mov_b32 s58, 0x55555555")
    S("s_lshl_b32 s58, s58, s50")
    S("s_cmp_eq_u32 s51, 0")
    S("s_cselect_b32 s64, s58, 0")
    S("s_cselect_b32 s65, 0, s58")
    expect()
    poll(S,3,7,28,68,64,69,66)
    S.label(Ld1)
    S("s_nop 1")
    layer_offsets()
    S.vm_done=S.vm_issued-0
    stamp(S,2,48)
    S("s_lshl_b32 s78, s54, 15")
    S("s_add_u32 s78, s78, s70")
    S("s_lshl_b32 s79, s54, 12")
    S("s_add_u32 s79, s79, s71")
    btok={}
    def ldfrag(s, sbase=78):
        def f(S):
            if s%4==0 and s>0: S(f"s_add_u32 s{sbase}, s{sbase}, 4096")
            btok[s]=S(f"buffer_load_dwordx4 v[{128+4*(s%32)}:{131+4*(s%32)}], v1, s[28:31], s{sbase} offen offset:{(s%4)*1024} sc1{cfg.ntact}")
        return f
    PF=cfg.PF
    for s in range(PF): ldfrag(s)(S)
    S("v_and_b32 v7, 31, v0")
    S("v_lshlrev_b32 v7, 4, v7")
    st_regs=list(range(96,128))
    stt={}
    def ldstat(u):
        def f(S): stt[u]=S(f"buffer_load_dwordx4 v[{96+4*u}:{99+4*u}], v7, s[28:31], s79 offen offset:{u*512} sc1")
        return f
    def load_sched():
        q=[('f',i) for i in range(PF,PF+6)]+[('s',u) for u in range(8)]+[('f',i) for i in range(PF+6,32)]
        return q
    def mkpost(item):
        k,i=item
        return (ldfrag(i),1.5 if i%4==0 else 1) if k=='f' else (ldstat(i),1)
    S.barrier("Ba")
    stamp(S,3,48)
    AK,AV,AQ=64,80,96
    steps=[]; fill=[]; lq=load_sched()
    for s in range(32):
        for t,(acc,vr,it) in enumerate(((AK,5,0),(AV,6,1))):
            d=dict(acc=acc,c=('0' if s==0 else accs(acc)),a=('tr',vr,(s%16)*1024),b=128+4*s,btok=(lambda s=s: btok[s]))
            if s%16==0: d['pre_reads']=setaddr(vr, it+2*(s//16))
            if lq:
                d['post'],d['postcost']=mkpost(lq.pop(0))
            steps.append(d)
    steps[cfg.ba2]['after']=(lambda S: S.barrier("Ba2"))
    if cfg.prof and cfg.prof_kv:
        for k,ix in ((3,59),(11,60),(19,61),(35,62),(51,63)):
            steps[k]['after']=(lambda S,ix=ix: stamp(S,ix,48))
    def waitst(S): S.wait(stt[7])
    fill.append((30,0,waitst))
    for c,t in stats_to_frag(S, st_regs, (8,9,10,11), 28, out_rstd=12): fill.append((30,c,t))
    nstat_fill=len(fill)
    cstok={}
    def after_kv(S):
        pbar(S,"Bb")
        S(f"v_lshlrev_b32 v13, 3, v0")
        S(f"v_add_u32 v13, {CST}, v13")
        cstok['k']=S(f"ds_read_b64 v[32:33], v13 offset:{0*512}")
        cstok['v']=S(f"ds_read_b64 v[36:37], v13 offset:{1*512}")
        if True:
            S(f"s_mov_b32 s57, {IDS}")
            S("v_lshlrev_b32 v27, 2, v0")
            S("v_add_u32 v27, s57, v27")
            cstok['id']=S("buffer_load_dword v127, v27, s[28:31], 0 offen sc1")
    steps[-1]['after']=after_kv
    nkv=len(steps)
    qsteps=[]
    for s in range(32):
        d=dict(acc=AQ,c=('0' if s==0 else accs(AQ)),a=('tr',5,(s%16)*1024),b=128+4*s)
        if s%16==0: d['pre_reads']=setaddr(5, 4+s//16)
        qsteps.append(d)
    qsteps[0]['need_fill']=nstat_fill
    corrK=dict(acc=AK,c=accs(AK),a=('reg',32,lambda: cstok['k']),b=28)
    corrV=dict(acc=AV,c=accs(AV),a=('reg',36,lambda: cstok['v']),b=28)
    def rdq(S): cstok['q']=S(f"ds_read_b64 v[32:33], v13 offset:{2*512}")
    corrV['post']=rdq
    corrQ=dict(acc=AQ,c=accs(AQ),a=('reg',32,lambda: cstok['q']),b=28)
    steps += qsteps[:4]+[corrK,corrV]+qsteps[4:]+[corrQ]
    kvdone=nkv+4+2+3
    S_k=[]
    for hd in range(2):
        for i in range(8):
            fill.append((kvdone,1,f"v_mul_f32 v{AK+8*hd+i}, v{AK+8*hd+i}, v12"))
        for i in range(4):
            fill.append((kvdone,1,f"v_cvt_pk_bf16_f32 v{16+4*hd+i}, v{AK+8*hd+2*i}, v{AK+8*hd+2*i+1}"))
    def kvaddr(S):
        S("v_and_b32 v14, 31, v0")
        S("s_lshl_b32 s57, s20, 5")
        S("s_add_u32 s57, s57, 16")
        S("v_add_u32 v14, s57, v14")
        S("v_lshlrev_b32 v14, 4, v14")
        S(f"v_add_u32 v14, {SCR}, v14")
        S("v_lshrrev_b32 v15, 5, v0")
        S("v_mul_u32_u24 v15, 2304, v15")
        S("v_add_u32 v24, v14, v15")
        S("v_add_u32 v25, v24, v15")
    fill.append((kvdone,7,kvaddr))
    for hd in range(2):
        fill.append((kvdone,1,f"ds_write_b128 v24, v[{16+4*hd}:{19+4*hd}] offset:{KBUF-SCR+hd*4608}"))
    for q in range(4):
        for i in range(4):
            fill.append((kvdone,1,f"v_mul_f32 v{AV+4*q+i}, v{AV+4*q+i}, v12"))
        hd,part=q//2,q%2
        fill.append((kvdone,1,f"ds_write_b128 v25, v[{AV+4*q}:{AV+4*q+3}] offset:{VBUF-SCR+hd*9216+part*2304}"))
    mfma_stream(S,steps,fill)
    stamp(S,4,48)
    for i in range(16): S(f"v_mul_f32 v{AQ+i}, v{AQ+i}, v12")
    for i in range(8): S(f"v_cvt_pk_bf16_f32 v{112+i}, v{AQ+2*i}, v{AQ+2*i+1}")
    if True:
        Lok=S.newlabel('Lidok'); Lrt=S.newlabel('Lidretry')
        S.wait(cstok['id'])
        mov64(S,64,0xFFFF)
        S("s_add_u32 s68, s23, 16")
        S("v_subrev_u32 v126, s68, v127")
        S("v_cmp_gt_u32 vcc, 8, v126")
        S("s_and_b64 s[66:67], vcc, s[64:65]")
        S("s_cmp_eq_u64 s[66:67], s[64:65]")
        S(f"s_cbranch_scc1 {Lok}")
        poll(S,27,126,28,68,64,69,66,span=8)
        S.label(Lok)
        S("s_sub_u32 s57, s89, s68")
        S("v_cmp_eq_u32 vcc, s57, v126")
        S("s_and_b64 s[66:67], vcc, s[64:65]")
        S("s_cmp_eq_u64 s[66:67], s[64:65]")
        S(f"s_cselect_b32 s34, {WS_USED}, 0")
        S(f"s_cselect_b32 s38, 0, {WS_USED}")
        if os.environ.get('FORCE_SLOW'):
            S("s_mov_b32 s34, 0"); S(f"s_mov_b32 s38, {WS_USED}")
    S.wait(lg_all=True)
    S.barrier("Bc")
    stamp(S,5,48)
    S("v_subrev_u32 v24, 224, v24")
    S("v_subrev_u32 v25, 224, v25")
    KU=[128+4*i for i in range(16)]
    ktok={}
    for hd in range(2):
        for w in range(8):
            if hd==1 and w==7: S.wait(ktok[(0,0)])
            ktok[(hd,w)]=S(f"ds_read_b128 v[{KU[hd*8+w]}:{KU[hd*8+w]+3}], v24 offset:{KBUF-SCR+hd*4608+(14-2*w)*16}")
    SA=[192+i for i in range(8)]; SB=[200+i for i in range(8)]
    for hd,SS in ((0,SA),(1,SB)):
        S.wait(ktok[(hd,7)])
        for d in range(4):
            for w in range(8):
                k=KU[hd*8+w]+d
                S(f"v_dot2_f32_bf16 v{SS[w]}, v{112+4*hd+d}, v{k}, {'0' if d==0 else 'v%d'%SS[w]}")
    VU0=[208+4*i for i in range(12)]+[64+4*i for i in range(4)]
    VU1=[128+4*i for i in range(16)]
    vtok={}
    def rdV(hd,VU,lo,hi):
        for idx in range(lo,hi):
            w,part=idx//2,idx%2
            vtok[(hd,w,part)]=S(f"ds_read_b128 v[{VU[idx]}:{VU[idx]+3}], v25 offset:{VBUF-SCR+hd*9216+part*2304+(14-2*w)*16}")
    rdV(0,VU0,0,14)
    for w in range(8): S(f"v_permlane32_swap_b32 v{SA[w]}, v{SB[w]}")
    for w in range(8): S(f"v_add_f32 v{SA[w]}, v{SA[w]}, v{SB[w]}")
    Lm=S.newlabel('Lnomask')
    S("s_lshl_b32 s57, s21, 2")
    S("s_add_u32 s57, s57, s20")
    S("s_cmp_lg_u32 s57, 0")
    S(f"s_cbranch_scc1 {Lm}")
    S("v_and_b32 v7, 31, v0")
    S(f"v_mov_b32 v26, {hexf(-4e9)}")
    for w in range(1,8):
        S(f"v_cmp_gt_u32 vcc, {2*w}, v7")
        S(f"v_cndmask_b32 v{SA[w]}, v{SA[w]}, v26, vcc")
    S.label(Lm)
    S("s_nop 1")
    cs=0.25*1.4426950408889634
    S(f"v_max3_f32 v26, v{SA[0]}, v{SA[1]}, v{SA[2]}")
    S(f"v_max3_f32 v27, v{SA[3]}, v{SA[4]}, v{SA[5]}")
    S(f"v_max3_f32 v26, v26, v{SA[6]}, v{SA[7]}")
    S(f"v_max_f32 v26, v26, v27")
    S(f"s_mov_b32 s57, {hexf(cs)}")
    S(f"v_mul_f32 v26, {hexf(-cs)}, v26")
    for w in range(8): S(f"v_fma_f32 v{SA[w]}, v{SA[w]}, s57, v26")
    for w in range(8): S(f"v_exp_f32 v{SA[w]}, v{SA[w]}")
    S.wait(vtok[(0,0,1)])
    rdV(0,VU0,14,16)
    S(f"v_add_f32 v26, v{SA[0]}, v{SA[1]}")
    S(f"v_add_f32 v27, v{SA[2]}, v{SA[3]}")
    S(f"v_add_f32 v15, v{SA[4]}, v{SA[5]}")
    S(f"v_add_f32 v14, v{SA[6]}, v{SA[7]}")
    S(f"v_add_f32 v26, v26, v27")
    S(f"v_add_f32 v15, v15, v14")
    S(f"v_add_f32 v26, v26, v15")
    S(f"v_rcp_f32 v26, v26")
    for w in range(8): S(f"v_mul_f32 v{SA[w]}, v{SA[w]}, v26")
    for w in range(8): S(f"v_mov_b32 v{SB[w]}, v{SA[w]}")
    for w in range(8): S(f"v_permlane32_swap_b32 v{SA[w]}, v{SB[w]}")
    def pv(hd,VU,P,cb=None):
        for w in range(8):
            p=P[w]; pe=p&~1
            sel = ("op_sel:[0,0,0] op_sel_hi:[1,0,1]","op_sel:[0,0] op_sel_hi:[1,0]") if p%2==0 else ("op_sel:[0,1,0] op_sel_hi:[1,1,1]","op_sel:[0,1] op_sel_hi:[1,1]")
            for part in range(2):
                S.wait(vtok[(hd,w,part)])
                u=VU[2*w+part]
                for hh in range(2):
                    o=96+8*hd+4*part+2*hh
                    if w==0:
                        S(f"v_pk_mul_f32 v[{o}:{o+1}], v[{u+2*hh}:{u+2*hh+1}], v[{pe}:{pe+1}] {sel[1]}")
                    else:
                        S(f"v_pk_fma_f32 v[{o}:{o+1}], v[{u+2*hh}:{u+2*hh+1}], v[{pe}:{pe+1}], v[{o}:{o+1}] {sel[0]}")
                if cb: cb(2*w+part)
    pv(0,VU0,SA,cb=lambda idx: (rdV(1,VU1,idx-2,idx-1) if idx>=2 else None))
    rdV(1,VU1,14,15)
    S.wait(vtok[(1,0,0)])
    rdV(1,VU1,15,16)
    pv(1,VU1,SB)
    for i in range(8): S(f"v_cvt_pk_bf16_f32 v{16+i}, v{96+2*i}, v{97+2*i}")
    for b in (16,20):
        S(f"v_permlane32_swap_b32 v{b}, v{b+2}")
        S(f"v_permlane32_swap_b32 v{b+1}, v{b+3}")
    S("s_lshl_b32 s57, s54, 15")
    S("s_lshl_b32 s58, s22, 11")
    S("s_add_u32 s57, s57, s58")
    S("s_add_u32 s57, s57, s72")
    st2("v[16:19]",1,57,0); st2("v[20:23]",1,57,1024)
    stamp(S,6,48)
    bump(); set_flag()
    stamp(S,7,48)
    if cfg.stop_after==1:
        S("s_branch L_fin"); return S

    def gemm2(name, nsteps, s_act, act_tile_bytes, khalf_bytes, s_res, mask_fn, items_fn, bars, s_out, s_sout, final):
        S.comment(f"======== {name} ========")
        AO,AT=64,80
        S("v_lshrrev_b32 v12, 5, v0"); S("v_lshlrev_b32 v12, 10, v12")
        S("v_bfe_u32 v13, v0, 2, 2"); S("v_lshl_add_u32 v12, v13, 7, v12")
        S("v_bfe_u32 v13, v0, 3, 1"); S("v_lshl_add_u32 v12, v13, 6, v12")
        S("v_bfe_u32 v13, v0, 4, 1"); S("v_lshl_add_u32 v12, v13, 5, v12")
        S("v_and_b32 v13, 3, v0"); S("v_lshl_add_u32 v12, v13, 3, v12")
        S("s_lshl_b32 s57, s51, 6")
        S("v_xor_b32 v12, s57, v12")
        S("v_xor_b32 v13, 64, v12")
        S("v_and_b32 v7, 31, v0")
        S("v_lshlrev_b32 v7, 4, v7")
        S("v_lshrrev_b32 v8, 5, v0")
        S("v_lshl_add_u32 v7, v8, 3, v7")
        S("s_lshl_b32 s57, s55, 15")
        S("s_lshl_b32 s58, s53, 12")
        S("s_add_u32 s57, s57, s58")
        S("s_lshl_b32 s58, s51, 11")
        S("s_add_u32 s80, s57, s58")
        S(f"s_add_u32 s57, s80, s{s_res}")
        rt=None
        if name=="P2":
            Lx=S.newlabel('Lresx'); Ly=S.newlabel('Lresd')
            S("s_cmp_eq_u32 s48, 0")
            S(f"s_cbranch_scc1 {Lx}")
        for q in range(4):
            rt=S(f"buffer_load_dwordx2 v[{16+2*q}:{17+2*q}], v7, s[28:31], s57 offen offset:{q*512} sc1")
        if name=="P2":
            S(f"s_branch {Ly}")
            S.label(Lx)
            S("v_and_b32 v9, 31, v0")
            S("s_lshl_b32 s57, s98, 5")
            S("v_add_u32 v9, s57, v9")
            S("v_lshlrev_b32 v9, 10, v9")
            S("v_lshl_add_u32 v9, v8, 3, v9")
            S("s_lshl_b32 s57, s53, 7")
            S("s_lshl_b32 s58, s51, 6")
            S("s_add_u32 s57, s57, s58")
            for q in range(4):
                S(f"buffer_load_dwordx2 v[{16+2*q}:{17+2*q}], v9, s[40:43], s57 offen offset:{q*16}")
            S.label(Ly)
            S.force_wait(vm=True)
        S.wait(rt)
        for q in range(4):
            for d in range(2):
                S(f"v_lshlrev_b32 v{AO+4*q+2*d}, 16, v{16+2*q+d}")
                S(f"v_and_b32 v{AO+4*q+2*d+1}, 0xffff0000, v{16+2*q+d}")
        mask_fn()
        expect()
        sb=8 if name=="P2" else 20
        poll(S,3,7,28,68,64,69,66)
        stamp(S,sb,48)
        S(f"s_mul_i32 s78, s55, {act_tile_bytes}")
        S(f"s_add_u32 s78, s78, s{s_act}")
        S(f"s_mul_i32 s57, s51, {khalf_bytes}")
        S("s_add_u32 s78, s78, s57")
        bt={}
        def ld(s):
            def f(S):
                if s%4==0 and s>0: S("s_add_u32 s78, s78, 4096")
                r=128+4*(s%32)
                bt[s]=S(f"buffer_load_dwordx4 v[{r}:{r+3}], v1, s[28:31], s78 offen offset:{(s%4)*1024} sc1{cfg.ntact}")
            return f
        PF2=cfg.PF2
        nxt2=[min(PF2,nsteps)]
        for s in range(min(PF2,nsteps)): ld(s)(S)
        S.barrier(bars[0])
        stamp(S,sb+1,48)
        steps=[]
        for s in range(nsteps):
            for t,(acc,vr) in enumerate(((AO,5),(AT,6))):
                c = accs(acc) if (t==0 or s>0) else '0'
                d=dict(acc=acc,c=c,b=128+4*(s%32),btok=(lambda s=s: bt[s]))
                off,pre,bar=items_fn(s,t)
                d['a']=('tr',vr,off); d['a2']=512
                if pre: d['pre_reads']=pre
                lim = s+cfg.PF2MAX
                if nxt2[0]<nsteps and nxt2[0]<=lim:
                    d['post']=ld(nxt2[0]); d['postcost']=1.5 if nxt2[0]%4==0 else 1; nxt2[0]+=1
                if t==1:
                    if bar: d['after']=(lambda S,bar=bar: pbar(S,bar))
                steps.append(d)
        if name=="P2": steps[cfg.bd2]['after']=(lambda S: S.barrier("Bd2"))
        mfma_stream(S,steps,[])
        stamp(S,sb+2,48)
        S("s_lshl_b32 s57, s20, 12")
        S(f"s_add_u32 s57, s57, {SCR}")
        S("v_add_u32 v8, s57, v1")
        S("s_xor_b32 s58, s57, 0x2000")
        S("v_add_u32 v9, s58, v1")
        for q in range(4): S(f"ds_write_b128 v8, v[{AT+4*q}:{AT+4*q+3}] offset:{q*1024}")
        S.wait(lg_all=True)
        S.barrier(bars[-1])
        stamp(S,sb+3,48)
        tk=[S(f"ds_read_b128 v[{96+4*q}:{99+4*q}], v9 offset:{q*1024}") for q in range(4)]
        for q in range(4):
            S.wait(tk[q])
            S(f"v_pk_add_f32 v[{AO+4*q}:{AO+4*q+1}], v[{AO+4*q}:{AO+4*q+1}], v[{96+4*q}:{97+4*q}]")
            S(f"v_pk_add_f32 v[{AO+4*q+2}:{AO+4*q+3}], v[{AO+4*q+2}:{AO+4*q+3}], v[{96+4*q+2}:{97+4*q+2}]")
        for i in range(8): S(f"v_cvt_pk_bf16_f32 v{16+i}, v{AO+2*i}, v{AO+2*i+1}")
        S(f"v_pk_mul_f32 v[96:97], v[{AO}:{AO+1}], v[{AO}:{AO+1}]")
        S(f"v_pk_add_f32 v[98:99], v[{AO}:{AO+1}], v[{AO+2}:{AO+3}]")
        S(f"v_pk_fma_f32 v[96:97], v[{AO+2}:{AO+3}], v[{AO+2}:{AO+3}], v[96:97]")
        for i in range(2,8):
            S(f"v_pk_add_f32 v[98:99], v[98:99], v[{AO+2*i}:{AO+2*i+1}]")
            S(f"v_pk_fma_f32 v[96:97], v[{AO+2*i}:{AO+2*i+1}], v[{AO+2*i}:{AO+2*i+1}], v[96:97]")
        for b in (16,20):
            S(f"v_permlane32_swap_b32 v{b}, v{b+2}")
            S(f"v_permlane32_swap_b32 v{b+1}, v{b+3}")
        S("v_add_f32 v98, v98, v99")
        S("v_add_f32 v96, v96, v97")
        S("v_permlane32_swap_b32 v98, v96")
        S("v_add_f32 v98, v98, v96")
        S("v_and_b32 v10, 31, v0")
        S("v_lshlrev_b32 v10, 4, v10")
        S("v_lshrrev_b32 v11, 5, v0")
        S("v_lshl_add_u32 v10, v11, 2, v10")
        S("s_lshl_b32 s58, s53, 9")
        S("s_lshl_b32 s59, s51, 3")
        S("s_add_u32 s81, s58, s59")
        return
    def out_tl(s_out,s_sout):
        S(f"s_add_u32 s57, s80, s{s_out}")
        st2("v[16:19]",1,57,0); st2("v[20:23]",1,57,1024)
        S("s_lshl_b32 s58, s55, 12")
        S("s_add_u32 s58, s58, s81")
        S(f"s_add_u32 s58, s58, s{s_sout}")
        st2("v98",10,58,0,'')

    def mask2():
        S("s_lshl_b32 s57, s52, 1")
        S("s_add_u32 s57, s57, s50")
        S("s_mov_b32 s58, 0x11111111")
        S("s_lshl_b32 s58, s58, s57")
        S("s_cmp_eq_u32 s51, 0")
        S("s_cselect_b32 s64, s58, 0")
        S("s_cselect_b32 s65, 0, s58")
    S("s_lshl_b32 s82, s51, 15")
    S("s_lshl_b32 s83, s51, 14")
    def items2(s,t):
        pre=None
        if s%8==0: pre = setaddr2(5+t,6+s//8,extra_s=82)
        return (s%8)*2048,pre,None
    gemm2("P2",16,72,TILE,16384,70,mask2,items2,["Bd","Be"],73,74,False)
    out_tl(73,74)
    stamp(S,12,48)
    bump(); set_flag()
    stamp(S,13,48)
    if cfg.stop_after==2:
        S("s_branch L_fin"); return S

    S("s_mov_b32 s58, 0x55555555")
    S("s_lshl_b32 s58, s58, s50")
    S("s_cmp_eq_u32 s51, 0")
    S("s_cselect_b32 s64, s58, 0")
    S("s_cselect_b32 s65, 0, s58")
    expect()
    poll(S,3,7,28,68,64,69,66)
    stamp(S,14,48)
    S("s_lshl_b32 s78, s54, 15")
    S("s_add_u32 s78, s78, s73")
    S("s_lshl_b32 s79, s54, 12")
    S("s_add_u32 s79, s79, s74")
    btok.clear(); stt.clear()
    for s in range(PF): ldfrag(s)(S)
    S("v_and_b32 v7, 31, v0")
    S("v_lshlrev_b32 v7, 4, v7")
    lq=load_sched()
    S("s_lshl_b32 s57, s22, 3")
    S("s_mul_hi_u32 s57, s57, 0x55555556")
    S("s_lshl_b32 s57, s57, 11")
    S(f"s_mul_i32 s84, s54, {HTILE}")
    S("s_add_u32 s84, s84, s57")
    S("s_add_u32 s84, s84, s75")
    S.barrier("Bf")
    stamp(S,15,48)
    AG=[64,96]; AU=[80,112]
    gA,gB,gI=8,9,10
    steps=[]; fill=[]
    fill.append((30,0,lambda S: S.wait(stt[7])))
    for c,t in stats_to_frag(S, st_regs, (11,12,13,14), 28, gelu=(gA,gB,gI)): fill.append((30,c,t))
    nstat_fill=len(fill)
    S("v_lshlrev_b32 v15, 3, v0")
    S(f"v_add_u32 v15, {CST}, v15")
    cst={}
    def rdcs(key,reg,tile):
        def f(S): cst[key]=S(f"ds_read_b64 v[{reg}:{reg+1}], v15 offset:{tile*512}")
        return f
    def epi_g(p, ms):
        pass
    def epilogue(p, ms_g, ms_u):
        ag,au=AG[p%2],AU[p%2]
        T=[11,12,13,14]
        for q in range(4):
            idx=[4*q+i for i in range(4)]
            for i,k in enumerate(idx): fill.append((ms_g,1,f"v_mul_f32 v{T[i]}, v{ag+k}, v{ag+k}"))
            for i,k in enumerate(idx): fill.append((ms_g,1,f"v_fma_f32 v{T[i]}, v{T[i]}, v{gB}, v{gA}"))
            for i,k in enumerate(idx): fill.append((ms_g,1,f"v_mul_f32 v{T[i]}, v{T[i]}, v{ag+k}"))
            for i,k in enumerate(idx): fill.append((ms_g,2,f"v_exp_f32 v{T[i]}, v{T[i]}"))
            for i,k in enumerate(idx): fill.append((ms_g,1,f"v_fma_f32 v{T[i]}, v{T[i]}, v{gI}, v{gI}"))
            for i,k in enumerate(idx): fill.append((ms_g,2,f"v_rcp_f32 v{T[i]}, v{T[i]}"))
            for i,k in enumerate(idx): fill.append((ms_g,1,f"v_mul_f32 v{ag+k}, v{ag+k}, v{T[i]}"))
        for k in range(16): fill.append((ms_u,1,f"v_mul_f32 v{au+k}, v{au+k}, v{ag+k}"))
        for i in range(8): fill.append((ms_u,1,f"v_cvt_pk_bf16_f32 v{16+i}, v{au+2*i}, v{au+2*i+1}"))
        for b in (16,20):
            fill.append((ms_u,2,f"v_permlane32_swap_b32 v{b}, v{b+2}"))
            fill.append((ms_u,2,f"v_permlane32_swap_b32 v{b+1}, v{b+3}"))
        def stf(S,p=p):
            S(f"s_add_u32 s57, s84, {p*2048}")
            st2("v[16:19]",1,57,0); st2("v[20:23]",1,57,1024)
        fill.append((ms_u,4,stf))
    gbars=["G1","G2","G3","G4","G5","G6"]
    for p in range(2):
        for s in range(32):
            for t,(acc,vr) in enumerate(((AG[p%2],5),(AU[p%2],6))):
                d=dict(acc=acc,c=('0' if s==0 else accs(acc)),a=('tr',vr,(s%16)*1024),b=128+4*s)
                if p==0: d['btok']=(lambda s=s: btok[s])
                if s%16==0: d['pre_reads']=setaddr(vr,10+4*p+2*(s//16)+t)
                if p==0 and lq:
                    d['post'],d['postcost']=mkpost(lq.pop(0))
                if t==1 and s%16==15:
                    bar=gbars[2*p+s//16]
                    if s==31:
                        def aft(S,bar=bar,p=p):
                            pbar(S,bar)
                            rdcs(('g',p),32,3+2*p)(S); rdcs(('u',p),36,4+2*p)(S)
                        d['after']=aft
                    else:
                        d['after']=(lambda S,bar=bar: pbar(S,bar))
                steps.append(d)
        steps.append(('corr',p))
    p=2
    for t,(acc,it0) in enumerate(((AG[0],18),(AU[0],20))):
        for s in range(32):
            d=dict(acc=acc,c=('0' if s==0 else accs(acc)),a=('tr',5+t,(s%16)*1024),b=128+4*s)
            if s%16==0: d['pre_reads']=setaddr(5+t,it0+s//16)
            if s==31:
                bar=gbars[4+t]
                def aft(S,bar=bar,t=t):
                    pbar(S,bar)
                    rdcs(('g2' if t==0 else 'u2'),32 if t==0 else 36,7+t)(S)
                d['after']=aft
            steps.append(d)
        steps.append(('corr2',t))
    out=[]; pend=[]
    for st in steps:
        if isinstance(st,tuple):
            pend.append([st,3]); continue
        out.append(st)
        for pe in pend: pe[1]-=1
        while pend and pend[0][1]<=0:
            kind,idx=pend.pop(0)[0]
            if kind=='corr':
                out.append(dict(acc=AG[idx%2],c=accs(AG[idx%2]),a=('reg',32,lambda idx=idx: cst[('g',idx)]),b=28,tag=('cg',idx)))
                out.append(dict(acc=AU[idx%2],c=accs(AU[idx%2]),a=('reg',36,lambda idx=idx: cst[('u',idx)]),b=28,tag=('cu',idx)))
            else:
                out.append(dict(acc=AG[0],c=accs(AG[0]),a=('reg',32,lambda: cst['g2']),b=28,tag=('cg',2)))
    out.append(dict(acc=AU[0],c=accs(AU[0]),a=('reg',36,lambda: cst['u2']),b=28,tag=('cu',2)))
    steps=out
    pos={st['tag']:i for i,st in enumerate(steps) if 'tag' in st}
    first_g1=[i for i,st in enumerate(steps) if st.get('acc')==AG[1] and st['c']=='0'][0]
    steps[first_g1]['need_fill']=nstat_fill
    first_g2=[i for i,st in enumerate(steps) if st.get('acc')==AG[0] and st['c']=='0'][1]
    for p in range(3):
        if cfg.dbg_noepi and p<2:
            if p==0: steps[first_g2]['need_fill']=len(fill)
            continue
        epilogue(p,pos[('cg',p)]+4,pos[('cu',p)]+4)
        if p==0: steps[first_g2]['need_fill']=len(fill)
    mfma_stream(S,steps,fill)
    stamp(S,16,48)
    bump(); set_flag()
    stamp(S,17,48)
    if cfg.stop_after==3:
        S("s_branch L_fin"); return S

    def mask4():
        S("s_lshl_b32 s57, s52, 1")
        S("s_add_u32 s57, s57, s50")
        S("s_mov_b32 s58, 0x11111111")
        S("s_lshl_b32 s58, s58, s57")
        S("s_lshl_b32 s59, 1, s57")
        S("s_cmp_eq_u32 s51, 0")
        S("s_cselect_b32 s64, s58, 0")
        S("s_cselect_b32 s65, s59, s58")
    S("s_mul_i32 s87, s51, 6144")
    kb=["K1","K2","K3","K4","K5"]
    def items4(s,t):
        g=s//8; sl=s%8
        pre=None
        if sl==0:
            if g<5: pre=setaddr2(5+t,22+2*g,extra_s=83)
            else: pre=setaddr2(5+t,32,add_s=87)
        bar = kb[g] if (sl==7 and g<5) else None
        return sl*2048,pre,bar
    gemm2("P4",43,75,HTILE,43*1024,73,mask4,items4,["Bh","K6"],None,None,True)
    Lfin=S.newlabel('Lfinal'); Ldone=S.newlabel('Lp4done')
    S("s_cmp_eq_u32 s48, 1")
    S(f"s_cbranch_scc1 {Lfin}")
    S(f"s_mov_b32 s76, {XB[2]}")
    S(f"s_mov_b32 s77, {STATS+2*SBUF}")
    out_tl(76,77)
    Lnh=S.newlabel('Lnohalo'); Lhd=S.newlabel('Lhalod')
    stamp(S,24,48)
    S("s_and_b32 s57, s52, s50")
    S("s_cmp_eq_u32 s57, 0")
    S(f"s_cbranch_scc1 {Lnh}")
    S("s_cmp_eq_u32 s21, 15")
    S(f"s_cbranch_scc1 {Lnh}")
    S("s_lshl_b32 s59, s53, 12")
    S("s_lshl_b32 s57, s51, 11")
    S("s_add_u32 s59, s59, s57")
    S(f"s_add_u32 s59, s59, {TEAMSZ+HALOX+32768}")
    S("buffer_store_dwordx4 v[16:19], v1, s[28:31], s59 offen sc1")
    S("buffer_store_dwordx4 v[20:23], v1, s[28:31], s59 offen offset:1024 sc1")
    S(f"s_add_u32 s59, s81, {TEAMSZ+HSTATS+4096}")
    S("buffer_store_dword v98, v10, s[28:31], s59 offen sc1")
    S.items.append(Ins("s_waitcnt vmcnt(3)"))
    S("s_add_u32 s57, s23, s49")
    S("s_add_u32 s57, s57, 1")
    S("v_mov_b32 v7, s57")
    S("s_mov_b64 exec, 1")
    S("buffer_store_dword v7, v4, s[32:35], 0 offen")
    S("buffer_store_dword v7, v4, s[36:39], 0 offen sc1")
    S.items.append(Ins("s_waitcnt vmcnt(2)"))
    S("s_lshl_b32 s57, s53, 3")
    S("s_lshl_b32 s58, s51, 2")
    S("s_add_u32 s57, s57, s58")
    S(f"s_add_u32 s57, s57, {TEAMSZ+HFLAGS+64}")
    S("v_mov_b32 v7, s57")
    S("s_add_u32 s57, s24, 1")
    S("v_mov_b32 v8, s57")
    S("buffer_store_dword v8, v7, s[28:31], 0 offen sc1")
    S("s_mov_b64 exec, -1")
    bump()
    S(f"s_branch {Lhd}")
    S.label(Lnh)
    bump(); set_flag()
    S.label(Lhd)
    stamp(S,25,48)
    if cfg.stop_after==4:
        S("s_branch L_fin"); return S
    S("s_mov_b32 s48, 1")
    S("s_branch L_layer")
    S.label(Lfin)
    S("s_nop 1")
    S("v_and_b32 v7, 31, v0")
    S("s_lshl_b32 s57, s98, 5")
    S("v_add_u32 v7, s57, v7")
    S("v_lshlrev_b32 v7, 10, v7")
    S("v_lshrrev_b32 v8, 5, v0")
    S("v_lshl_add_u32 v7, v8, 4, v7")
    S("s_lshl_b32 s57, s53, 7")
    S("s_lshl_b32 s58, s51, 6")
    S("s_add_u32 s57, s57, s58")
    S("buffer_store_dwordx4 v[16:19], v7, s[44:47], s57 offen")
    S("buffer_store_dwordx4 v[20:23], v7, s[44:47], s57 offen offset:32")
    S.force_wait(vm=True)
    stamp(S,26,48)
    S("s_or_b32 s57, s22, s20")
    S("s_cmp_lg_u32 s57, 0")
    S("s_cbranch_scc1 L_fin")
    S(f"v_mov_b32 v7, {EPOCH}")
    S("s_add_u32 s58, s23, 256")
    S("v_mov_b32 v8, s58")
    S("s_mov_b64 exec, 1")
    S("buffer_store_dword v8, v7, s[28:31], 0 offen")
    S("s_branch L_fin")
    return S

def gen_H():
    S=Stream('H')
    S.label("L_helper")
    S("s_nop 4")
    srd(S,32,6,7,512*1536*2)
    srd(S,36,8,9,512*512*2)
    srd(S,40,12,13,512*1376*2)
    srd(S,44,14,15,512*1376*2)
    srd(S,48,10,11,1376*512*2)
    S("s_sub_u32 s52, s20, 4")
    S("s_lshr_b32 s53, s22, 3")
    S("s_and_b32 s54, s22, 7")
    S("v_lshrrev_b32 v2, 2, v0")
    S("v_and_b32 v3, 3, v0")
    S("v_lshlrev_b32 v3, 4, v3")
    S("v_mul_u32_u24 v4, 3072, v2"); S("v_add_u32 v4, v4, v3")
    S("v_lshrrev_b32 v5, 3, v0"); S("v_lshlrev_b32 v5, 10, v5")
    S("v_bfe_u32 v8, v0, 4, 1"); S("v_lshlrev_b32 v8, 2, v8"); S("v_and_b32 v9, 7, v0"); S("v_xor_b32 v8, v8, v9")
    S("v_lshl_add_u32 v5, v8, 4, v5")
    S("v_mul_u32_u24 v6, 2752, v2"); S("v_add_u32 v6, v6, v3")
    S("s_lshl_b32 s55, s22, 6")
    S("s_lshl_b32 s56, s54, 7")
    S("s_lshl_b32 s57, s22, 3")
    S("s_mul_hi_u32 s57, s57, 0x55555556")
    S("s_lshl_b32 s57, s57, 6")
    S("s_mul_i32 s58, s52, 64*3072")
    S("s_mul_i32 s59, s52, 32*1024")
    S("s_mul_i32 s60, s52, 64*2752")
    S("s_lshl_b32 s61, s52, 12")
    S("v_add_u32 v3, s61, v1")
    if cfg.prof: S("s_mov_b32 s98, s92")
    hidx=[0]
    HN=[]
    def hs(name):
        if not (cfg.prof and cfg.prof_h): return
        hstamp(S,hidx[0]); HN.append(name); hidx[0]+=1
    S.hnames=HN
    itok={}
    win=[None]
    RREG={0:64,1:80,2:96,3:112,4:128,5:144,14:160,15:176,16:192,17:208,30:224,31:240} if cfg.retain else {}
    srd(S,84,16,17,2048*1024) if False else None
    def touch(soff_expr_lines, nkb, imm0=0, srdreg=28, vlane=1):
        if not cfg.pretouch: return
        for l in soff_expr_lines: S(l)
        for c in range(nkb):
            S(f"buffer_load_dword v8, v{vlane}, s[{srdreg}:{srdreg+3}], s62 offen offset:{(c%4)*1024}")
            if c%4==3 and c+1<nkb: S("s_add_u32 s62, s62, 4096")
    def warm_xcd(sr, nbytes, lo=0.0, hi=1.0):
        a=int(nbytes*lo)//1024; b=-(-int(nbytes*hi)//1024)
        per=-(-(b-a)//128)
        S("s_lshr_b32 s62, s2, 3"); S("s_lshl_b32 s62, s62, 2"); S("s_add_u32 s62, s62, s52")
        S(f"s_mul_i32 s62, s62, {per*1024}")
        S(f"s_add_u32 s62, s62, {a*1024}")
        for c in range(per):
            S(f"buffer_load_dword v8, v1, s[{sr}:{sr+3}], s62 offen offset:{(c%4)*1024}")
            if c%4==3 and c+1<per: S("s_add_u32 s62, s62, 4096")
    def warm_chip(sr, nbytes):
        kb=-(-nbytes//1024); per=-(-kb//1024)
        S("s_lshl_b32 s62, s2, 2"); S("s_add_u32 s62, s62, s52")
        S(f"s_mul_i32 s62, s62, {per*1024}")
        for c in range(per):
            S(f"buffer_load_dword v8, v1, s[{sr}:{sr+3}], s62 offen offset:{(c%4)*1024}")
    def touch_o_x1():
        touch(["s_lshl_b32 s62, s52, 15","s_lshl_b32 s63, s22, 11","s_add_u32 s62, s62, s63",f"s_add_u32 s62, s62, {OB[0]}"],2)
    def touch_xs(xb,sb):
        touch(["s_and_b32 s62, s52, 1","s_lshl_b32 s63, s53, 1","s_add_u32 s62, s62, s63","s_lshl_b32 s99, s62, 12","s_lshl_b32 s62, s62, 15",
               "s_lshl_b32 s63, s54, 12","s_add_u32 s62, s62, s63","s_lshr_b32 s63, s52, 1","s_lshl_b32 s63, s63, 11","s_add_u32 s62, s62, s63",
               f"s_add_u32 s62, s62, {xb}"],2)
        if cfg.pretouch:
            S("s_lshl_b32 s63, s54, 9"); S("s_add_u32 s62, s99, s63"); S(f"s_add_u32 s62, s62, {sb}")
            S("s_mov_b64 exec, 0xffffffff")
            S("buffer_load_dword v8, v1, s[28:31], s62 offen")
            S("s_mov_b64 exec, -1")
    def touch_out():
        if not cfg.pretouch: return
        S("s_add_u32 s84, s16, 0"); S("s_addc_u32 s85, s17, 0"); S(f"s_mov_b32 s86, {2048*1024}"); S("s_mov_b32 s87, 0x00020000")
        S("s_lshl_b32 s62, s21, 2"); S("s_lshl_b32 s63, s53, 1"); S("s_add_u32 s62, s62, s63"); S("s_and_b32 s63, s52, 1"); S("s_add_u32 s62, s62, s63")
        S("s_lshl_b32 s62, s62, 15")
        S("s_lshl_b32 s63, s54, 7"); S("s_add_u32 s62, s62, s63"); S("s_lshr_b32 s63, s52, 1"); S("s_lshl_b32 s63, s63, 6"); S("s_add_u32 s62, s62, s63")
        S("v_and_b32 v9, 31, v0"); S("v_lshlrev_b32 v9, 10, v9")
        S("buffer_load_dword v8, v9, s[84:87], s62 offen")
    def touch_h():
        touch([f"s_mul_i32 s62, s52, {HTILE}","s_lshl_b32 s63, s57, 5","s_add_u32 s62, s62, s63",f"s_add_u32 s62, s62, {HB[0]}"],6)
    def throttle():
        if win[0] is not None and S.vm_issued-S.vm_done>win[0]:
            S.wait(('vm',S.vm_issued-win[0]))
    def spec_of(i):
        if i<6:
            nm=['k','v','k','v','q','q'][i]; half=[0,0,1,1,0,1][i]
            col={'q':0,'k':1024,'v':2048}[nm]
            return (32,4,3072,55,col,256*half,58)
        elif i<10:
            return (36,5,512,56,0,256*(i-6),59)
        elif i<22:
            tbl={10:('g',0,0),11:('u',0,0),12:('g',0,1),13:('u',0,1),14:('g',1,0),15:('u',1,0),16:('g',1,1),17:('u',1,1),
                 18:('g',2,0),19:('g',2,1),20:('u',2,0),21:('u',2,1)}
            m,p,half=tbl[i]
            return (40 if m=='g' else 44,6,2752,57,64*p,256*half,60)
        return None
    def rload(i):
        r=RREG[i]
        if i<22:
            sr,vl,pitch,scol,colimm,row0,swave=spec_of(i)
            S(f"s_add_u32 s62, s{scol}, s{swave}")
            S(f"s_add_u32 s62, s62, {colimm+row0*pitch}")
        else:
            g=(i-22)//2; kh=(i-22)%2; row0=688*kh+128*g
            sr,vl,pitch=48,5,512
            S("s_add_u32 s62, s56, s59")
            S(f"s_add_u32 s62, s62, {row0*1024}")
        tok=None
        for c in range(4):
            if c>0: S(f"s_add_u32 s62, s62, {16*pitch}")
            tok=S(f"buffer_load_dwordx4 v[{r+4*c}:{r+4*c+3}], v{vl}, s[{sr}:{sr+3}], s62 offen{cfg.nt}"); throttle()
        itok[('r',i)]=tok
    def rput(n):
        L,i=divmod(n,NITEMS)
        base=(n*SLOT)&0x1ffff
        r=RREG[i]
        S.wait(itok[('r',i)])
        S(f"v_add_u32 v2, {base}, v3")
        tok=None
        for c in range(4):
            if S.lg_issued-S.lg_done>=14: S.wait(('lg',S.lg_issued-8))
            tok=S(f"ds_write_b128 v2, v[{r+4*c}:{r+4*c+3}] offset:{c*1024}")
        itok[n]=tok
    def dma(n):
        L,i=divmod(n,NITEMS)
        if i in RREG:
            if L==0 and ('r',i) not in itok: rload(i)
            rput(n); return
        base=(n*SLOT)&0x1ffff
        spec=spec_of(i)
        tok=None
        if spec:
            sr,vl,pitch,scol,colimm,row0,swave=spec
            S(f"s_add_u32 s62, s{scol}, s{swave}")
            S(f"s_add_u32 s62, s62, {colimm+row0*pitch}")
            S(f"s_add_u32 m0, s61, {base}")
            for c in range(4):
                if c>0:
                    S(f"s_add_u32 s62, s62, {16*pitch}")
                    S(f"s_add_u32 m0, m0, 1024")
                tok=S(f"buffer_load_dwordx4 v{vl}, s[{sr}:{sr+3}], s62 offen lds"); throttle()
        elif i<32:
            g=(i-22)//2; kh=(i-22)%2
            row0=688*kh+128*g
            S("s_add_u32 s62, s56, s59")
            S(f"s_add_u32 s62, s62, {row0*1024}")
            S(f"s_add_u32 m0, s61, {base}")
            for c in range(4):
                if c>0:
                    S(f"s_add_u32 s62, s62, {8*1024}")
                    S(f"s_add_u32 m0, m0, 1024")
                tok=S(f"buffer_load_dwordx4 v5, s[48:51], s62 offen lds"); throttle()
        else:
            S("s_lshr_b32 s63, s52, 1"); S(f"s_mul_i32 s63, s63, {688*1024}")
            S("s_and_b32 s62, s52, 1"); S(f"s_mul_i32 s62, s62, {24*1024}")
            S("s_add_u32 s62, s62, s63")
            S("s_add_u32 s62, s62, s56")
            S(f"s_add_u32 s62, s62, {640*1024}")
            S("s_mul_i32 s63, s52, 3072")
            S(f"s_add_u32 m0, s63, {base}")
            for c in range(3):
                if c>0:
                    S(f"s_add_u32 s62, s62, {8*1024}")
                    S(f"s_add_u32 m0, m0, 1024")
                tok=S(f"buffer_load_dwordx4 v5, s[48:51], s62 offen lds"); throttle()
        itok[n]=tok
    nlayers = 2 if cfg.stop_after>4 else 1
    last_item = NITEMS*nlayers-1
    done=set()
    def issue(*ns):
        for n in ns:
            if n<=last_item and n not in done:
                dma(n); done.add(n)
    S("v_lshrrev_b32 v7, 4, v0"); S("v_lshlrev_b32 v7, 9, v7")
    S("v_bfe_u32 v8, v0, 2, 2"); S("v_lshl_add_u32 v7, v8, 6, v7")
    S("v_and_b32 v8, 3, v0"); S("v_lshl_add_u32 v7, v8, 3, v7")
    S("s_and_b32 s64, s52, 1")
    S("s_lshl_b32 s65, s64, 5")
    S("v_add_u32 v7, s65, v7")
    for r in range(12,16): S(f"v_mov_b32 v{r}, 0x3f803f80")
    S("v_mov_b32 v8, 0"); S("v_mov_b32 v9, 0"); S(f"v_mov_b32 v10, {ZERO8}")
    if S.lg_issued-S.lg_done>=14: S.wait(lg_all=True)
    S("ds_write_b64 v10, v[8:9]")
    S("v_lshrrev_b32 v11, 4, v0"); S("v_lshlrev_b32 v11, 9, v11")
    S("v_and_b32 v8, 15, v0"); S("v_lshl_add_u32 v11, v8, 4, v11"); S("v_add_u32 v11, 256, v11")
    S("v_and_b32 v16, 15, v0"); S("v_lshlrev_b32 v16, 4, v16"); S("v_add_u32 v16, 256, v16")
    S("s_lshr_b32 s66, s52, 1")
    S("s_lshl_b32 s67, s66, 9")
    S("s_lshl_b32 s68, s64, 7")
    S("s_add_u32 s67, s67, s68")
    S(f"s_add_u32 s67, s67, {CST}")
    S("v_and_b32 v17, 15, v0"); S("v_lshlrev_b32 v17, 3, v17")
    S("v_bfe_u32 v8, v0, 4, 1"); S("v_lshl_add_u32 v17, v8, 8, v17")
    S("v_add_u32 v17, s67, v17")
    S(f"v_mov_b32 v8, {ZERO8}")
    S("v_cmp_gt_u32 vcc, 32, v0")
    S("v_cndmask_b32 v17, v8, v17, vcc")
    for r in (22,23,26,27): S(f"v_mov_b32 v{r}, 0")
    S("v_and_b32 v18, 15, v0"); S("v_lshlrev_b32 v18, 4, v18")
    S("v_bfe_u32 v8, v0, 4, 1")
    S("v_lshrrev_b32 v9, 5, v0")
    S("v_mul_u32_u24 v19, 2304, v8"); S("v_add_u32 v19, v19, v18"); S("v_lshl_add_u32 v19, v9, 3, v19")
    S("s_mul_i32 s68, s64, 4608"); S(f"s_add_u32 s68, s68, {KBUF}")
    S("v_add_u32 v19, s68, v19")
    S("v_mul_u32_u24 v28, 4608, v8"); S("v_add_u32 v28, v28, v18")
    S("v_mul_u32_u24 v9, 2304, v9"); S("v_add_u32 v28, v28, v9")
    S("s_mul_i32 s68, s64, 9216"); S(f"s_add_u32 s68, s68, {VBUF}")
    S("v_add_u32 v28, s68, v28")
    S.force_wait(lg=True)

    if cfg.earlywarm:
        warm_chip(32,512*1536*2)
    if cfg.tlbwarm:
        S("v_mov_b32 v2, 0")
        S("s_mov_b64 exec, 1")
        for sr in (40,44,48):
            S(f"buffer_load_dword v36, v2, s[{sr}:{sr+3}], 0 offen")
        S("s_mov_b64 exec, -1")
    S.barrier("S0")
    win[0]=cfg.win0
    def chip_others():
        for sr,nb in ((36,512*512*2),(40,512*1376*2),(44,512*1376*2),(48,1376*512*2)): warm_chip(sr,nb)
    def narrow():
        for i in (0,1): rload(i)
        issue(0,1)
        for i in (2,3): rload(i)
        issue(2,3)
        for i in (4,5): rload(i)
        issue(4,5)
    so=cfg.startord
    if so=='A':
        warm_xcd(32,512*1536*2,0.0,0.5); warm_xcd(32,512*1536*2,0.5,1.0); narrow(); chip_others()
    elif so=='B':
        narrow(); touch_o_x1(); chip_others()
    elif so=='C':
        if not cfg.earlywarm: warm_chip(32,512*1536*2)
        narrow(); touch_o_x1(); chip_others()
    elif so=='F':
        win[0]=None
        for i in range(6): rload(i)
        issue(0,1)
    elif so=='D':
        for i in range(6): rload(i)
        chip_others()
        issue(0,1,2,3,4,5)
    elif so=='E':
        warm_xcd(32,512*1536*2,0.0,0.5)
        for i in (0,1): rload(i)
        warm_xcd(32,512*1536*2,0.5,1.0)
        for i in (2,3,4,5): rload(i)
        chip_others()
        issue(0,1,2,3,4,5)
    if cfg.stop_after==0:
        S.force_wait(vm=True); S("s_branch L_fin"); return S
    def cs_finish(dreg):
        S(f"v_cvt_pk_bf16_f32 v30, v{dreg}, v{dreg}")
        S(f"v_lshlrev_b32 v30, 16, v30")
        S(f"v_sub_f32 v31, v{dreg}, v30")
        S(f"v_cvt_pk_bf16_f32 v32, v{dreg}, v31")
        S(f"v_and_b32 v30, 0xffff0000, v32")
        S(f"v_sub_f32 v31, v31, v30")
        S(f"v_cvt_pk_bf16_f32 v33, v31, 0")
        S("v_and_b32 v30, 15, v0"); S("v_lshlrev_b32 v30, 3, v30")
        S("v_add_u32 v30, s70, v30")
        S("s_mov_b64 exec, 0xffff")
        S("ds_write_b64 v30, v[32:33]")
        S("s_mov_b64 exec, -1")
    def tr16(dst, vaddr, off):
        S(f"ds_read_b64_tr_b16 v[{dst}:{dst+1}], v{vaddr} offset:{off}")
        return S(f"ds_read_b64_tr_b16 v[{dst+2}:{dst+3}], v{vaddr} offset:{off+256}")
    def cs_item(nA,nB,tileA,halfA,tileB,halfB):
        bA=(nA*SLOT)&0x1ffff; bB=(nB*SLOT)&0x1ffff
        S.wait(lg_all=True)
        S("s_cmp_lt_u32 s52, 2")
        csel(S,69,bA,bB)
        csel(S,70,CST+tileA*512+halfA*256,CST+tileB*512+halfB*256)
        S("s_lshl_b32 s71, s64, 7")
        S("s_add_u32 s70, s70, s71")
        S("v_add_u32 v29, s69, v7")
        tk=[]
        for sp in range(4): tk.append(tr16(36+4*sp,29,sp*2048))
        for sp in range(8):
            S.wait(tk[sp])
            r=36+4*(sp%4)
            S(f"v_mfma_f32_16x16x32_bf16 v[52:55], v[12:15], v[{r}:{r+3}], {'0' if sp==0 else 'v[52:55]'}")
            if sp+4<8: tk.append(tr16(r,29,(sp+4)*2048))
        cs_finish(52)

    for L in range(nlayers):
        n0=NITEMS*L
        def pub(*items):
            toks=[itok[n0+i] for i in items if (n0+i) in itok]
            S.wait(*toks)
        def bar(name, publish=(), items=None, lg=True, w=None, pre=None):
            pub(*publish)
            if lg: S.wait(lg_all=True)
            hs(f"L{L} {name} arrive")
            S.barrier(name)
            hs(f"L{L} {name} pass")
            if pre: pre()
            if items is not None:
                win[0]=(None if w=='none' else (w if w is not None else cfg.win))
                issue(*[n0+i for i in items])
                hs(f"L{L} {name} issued")
        AF = 160 if L==0 else 64
        BT = 224 if L==0 else 128
        ST = AF
        if L==0:
            S(f"s_mov_b32 s76, {HALOX}")
            S(f"s_mov_b32 s77, {HSTATS}")
        else:
            S("s_cmp_eq_u32 s21, 0")
            csel(S,76,HALOX,HALOX+32768)
            csel(S,77,HSTATS,HSTATS+4096)
        bar("Ba",publish=(0,1),lg=True)
        if L==0 and cfg.startord=='F':
            pass
        lo0=((n0+0)*SLOT)&0x1ffff; lo1=((n0+1)*SLOT)&0x1ffff; hi0=((n0+2)*SLOT)&0x1ffff; hi1=((n0+3)*SLOT)&0x1ffff
        S("s_cmp_lt_u32 s52, 2")
        csel(S,69,lo0,lo1)
        csel(S,71,hi0,hi1)
        S("v_add_u32 v29, s69, v7")
        S("v_add_u32 v35, s71, v7")
        def spoll(maxit, Lok, sleep):
            Lp=S.newlabel('Lhp')
            S("s_mov_b32 s79, 0")
            S.label(Lp)
            S.smem("s_load_dwordx16 s[80:95], s[72:73], 0 glc")
            S("s_add_u32 s79, s79, 1")
            S.force_wait(lg=True)
            scheck(Lok)
            if sleep: S(f"s_sleep {sleep}")
            S(f"s_cmp_lt_u32 s79, {maxit}")
            S(f"s_cbranch_scc1 {Lp}")
        def scheck(Lok):
            for i in range(16): S(f"s_xor_b32 s{80+i}, s{80+i}, s75")
            for st_ in (8,4,2,1):
                for i in range(st_): S(f"s_or_b32 s{80+i}, s{80+i}, s{80+i+st_}")
            S("s_cmp_eq_u32 s80, 0")
            S(f"s_cbranch_scc1 {Lok}")
        def swarm():
            if not cfg.halowarm: return
            S("s_lshl_b32 s79, s22, 2"); S("s_add_u32 s79, s79, s52")
            S("s_lshl_b32 s79, s79, 9"); S("s_add_u32 s79, s79, s76"); S("s_add_u32 s79, s79, 256")
            S("s_add_u32 s82, s18, s79"); S("s_addc_u32 s83, s19, 0")
            for c in range(4): S.smem(f"s_load_dword s84, s[82:83], {c*64} glc")
            S("s_lshl_b32 s79, s22, 1"); S("s_and_b32 s74, s52, 1"); S("s_add_u32 s79, s79, s74")
            S("s_lshr_b32 s74, s79, 2"); S("s_lshl_b32 s74, s74, 9"); S("s_and_b32 s79, s79, 3"); S("s_lshl_b32 s79, s79, 6")
            S("s_add_u32 s79, s79, s74"); S("s_add_u32 s79, s79, s77"); S("s_add_u32 s79, s79, 256")
            S("s_add_u32 s86, s18, s79"); S("s_addc_u32 s87, s19, 0")
            S.smem("s_load_dword s85, s[86:87], 0 glc")
        S("s_add_u32 s75, s23, 1")
        S(f"s_mov_b32 s74, {PF0 if L==0 else HFLAGS+64}")
        S("s_add_u32 s72, s18, s74")
        S("s_addc_u32 s73, s19, 0")
        for sp in range(7): tr16(AF+4*sp,29,sp*2048)
        S.wait(lg_all=True)
        tr16(AF+4*7,29,7*2048)
        S.wait(lg_all=True)
        if L==0:
            for q in range(8):
                S(f"v_mfma_f32_16x16x32_bf16 v[52:55], v[12:15], v[{AF+4*q}:{AF+4*q+3}], {'0' if q==0 else 'v[52:55]'}")
        hs(f"L{L} lo preread")
        if L==0 and cfg.startord=='F': issue(2,3,4,5)
        bar("Ba2",publish=(2,3,4,5),lg=True)
        for sp in range(8,15): tr16(AF+4*sp,35,(sp%8)*2048)
        S.wait(lg_all=True)
        tr16(AF+4*15,35,7*2048)
        S.wait(lg_all=True)
        if L==0:
            for q in range(8,16):
                S(f"v_mfma_f32_16x16x32_bf16 v[60:63], v[12:15], v[{AF+4*q}:{AF+4*q+3}], {'0' if q==8 else 'v[60:63]'}")
            S("s_lshl_b32 s70, s66, 9"); S("s_lshl_b32 s71, s64, 7"); S("s_add_u32 s70, s70, s71"); S(f"s_add_u32 s70, s70, {CST}")
            cs_finish(52)
            S("s_add_u32 s70, s70, 256")
            cs_finish(60)
            cs_item(n0+4,n0+5,2,0,2,1)
            S.wait(lg_all=True)
        hs(f"L{L} A preread")
        if L==0 and cfg.startord=='F':
            touch_o_x1(); chip_others()
        S.smem("s_load_dwordx16 s[80:95], s[72:73], 0 glc")
        bar("Bb",lg=False)
        LokB=S.newlabel('LhokB')
        S.force_wait(lg=True)
        if L==1:
            S("s_cmp_eq_u32 s21, 0")
            S(f"s_cbranch_scc1 {LokB}")
            if cfg.dbg_nohp: S(f"s_branch {LokB}")
        scheck(LokB)
        spoll(cfg.timeout,LokB,cfg.hsleep)
        S.label(LokB)
        S("s_nop 1")
        hs(f"L{L} halo flag")
        ht={}
        def hload(sp):
            if sp%2==0 and sp>0: S("s_add_u32 s76, s76, 4096")
            r=BT+4*(sp%8)
            ht[sp]=S(f"buffer_load_dwordx4 v[{r}:{r+3}], v11, s[28:31], s76 offen offset:{(sp%2)*2048} sc1")
        def ldstats():
            t=None
            for u in range(8):
                t=S(f"buffer_load_dwordx4 v[{ST+4*u}:{ST+3+4*u}], v16, s[28:31], s77 offen offset:{u*512} sc1")
            return t
        def dostats(t):
            S.wait(t)
            for c,tt_ in stats_to_frag(S, list(range(ST,ST+32)), (30,31,32,33), 20, out_rstd=34): S(tt_)
        for sp in range(8): hload(sp)
        for sp in range(16):
            S.wait(ht[sp])
            hb_=BT+4*(sp%8)
            S(f"v_mfma_f32_16x16x32_bf16 v[56:59], v[{AF+4*sp}:{AF+4*sp+3}], v[{hb_}:{hb_+3}], {'0' if sp==0 else 'v[56:59]'}")
            if sp+8<16: hload(sp+8)
            if sp==7:
                stt=ldstats()
        hs(f"L{L} halo mfma done")
        dostats(stt)
        ct=S("ds_read_b64 v[24:25], v17")
        S.wait(ct)
        S("v_mfma_f32_16x16x32_bf16 v[56:59], v[24:27], v[20:23], v[56:59]")
        for i in range(4): S(f"v_mul_f32 v{56+i}, v{56+i}, v34")
        Lv=S.newlabel('Lhv'); Ld=S.newlabel('Lhd')
        HALO_FIN=True
        S("s_cmp_ge_u32 s52, 2")
        S(f"s_cbranch_scc1 {Lv}")
        S("v_cvt_pk_bf16_f32 v30, v56, v57")
        S("v_cvt_pk_bf16_f32 v31, v58, v59")
        S("ds_write_b64 v19, v[30:31]")
        S(f"s_branch {Ld}")
        S.label(Lv)
        S("ds_write_b128 v28, v[56:59]")
        S.label(Ld)
        S.force_wait(lg=True)
        hs(f"L{L} halo written")
        def ld_r(*items):
            def f():
                win[0]=cfg.winL
                if L==0:
                    for i in items: rload(i)
            return f
        bar("Bc",items=(6,7,8,9,10,11),w='none',pre=(touch_o_x1 if L==1 else None))
        ld_r(14,15,16,17)()
        if cfg.stop_after==1+4*L:
            S.force_wait(vm=True); S("s_branch L_fin"); return S
        bar("Bd",publish=(6,7,8,9))
        bar("Bd2",items=(12,13),w='none')
        bar("Be",items=(14,15,16,17))
        if cfg.stop_after==2+4*L:
            S.force_wait(vm=True); S("s_branch L_fin"); return S
        bar("Bf",publish=(10,11,12,13))
        if L==0: cs_item(n0+10,n0+11,3,0,4,0)
        bar("G1",publish=(14,15),items=(18,19),w=cfg.winL,pre=touch_h)
        if L==0: cs_item(n0+12,n0+13,3,1,4,1)
        bar("G2",publish=(16,17),items=(20,21),w=cfg.winL)
        if L==0: cs_item(n0+14,n0+15,5,0,6,0)
        bar("G3",publish=(18,19),items=(22,23),w=cfg.winL)
        if L==0: cs_item(n0+16,n0+17,5,1,6,1)
        bar("G4",publish=(20,21),items=(24,25),w=cfg.winL)
        ld_r(30,31)()
        if L==0: cs_item(n0+18,n0+19,7,0,7,1)
        bar("G5",items=(26,27),w=cfg.winL)
        if cfg.warmP3 and L==0: warm_xcd(36,512*512*2)
        if L==0: cs_item(n0+20,n0+21,8,0,8,1)
        bar("G6",items=(28,29),w=cfg.winL)
        if cfg.stop_after==3+4*L:
            S.force_wait(vm=True); S("s_branch L_fin"); return S
        bar("Bh",publish=(22,23,24,25))
        bar("K1",publish=(26,27),items=(30,31))
        bar("K2",publish=(28,29),items=(32,33))
        bar("K3",publish=(30,31),items=(34,35),pre=None if L==0 else touch_out)
        bar("K4",publish=(32,),items=(36,37))
        bar("K5",items=(38,39))
        bar("K6",items=(40,))
        if cfg.stop_after==4+4*L:
            S.force_wait(vm=True); S("s_branch L_fin"); return S
    S("s_branch L_fin")
    return S

def build():
    P=gen_prologue(); C=gen_C(); H=gen_H()
    global HNAMES
    HNAMES=getattr(H,'hnames',[])
    nl = 2 if cfg.stop_after>4 else 1
    cb=C.barriers; hb=H.barriers
    assert cb[0]=="S0" and hb[0]=="S0"
    cb=cb[1:]; hb=hb[1:]
    if cfg.stop_after>=4:
        exp=cb*nl
        if cfg.stop_after in (5,6,7):
            pass
        else:
            assert hb==exp, (hb,exp)
    else:
        assert hb==cb, (hb,cb)
    hdr=open(os.path.join(os.path.dirname(os.path.abspath(__file__)),'header.txt')).read().rstrip('\n')
    txt=hdr+f"\n; @launch grid=(256,1,1) block=(512,1,1) lds={LDS_BYTES}\n"
    txt+='.amdgcn_target "amdgcn-amd-amdhsa--gfx950"\n.text\n'
    txt+=f".globl {KNAME}\n.p2align 8\n.type {KNAME},@function\n{KNAME}:\n"
    txt+=P.render()+"\n"+C.render()+"\n"+H.render()+"\n"
    txt+="L_fin:\n    s_waitcnt vmcnt(0) lgkmcnt(0)\nL_end:\n    s_endpgm\nL_codeend:\n"
    txt+=".set CODE_LAST, (L_codeend - L_pc - 16) & 0xfffffff0\n" if cfg.codepf else ""
    txt+=f""".section .rodata,"a"
.p2align 6
.amdhsa_kernel {KNAME}
  .amdhsa_next_free_vgpr 256
  .amdhsa_next_free_sgpr 100
  .amdhsa_accum_offset 256
  .amdhsa_group_segment_fixed_size 0
  .amdhsa_kernarg_size 80
  .amdhsa_user_sgpr_count 2
  .amdhsa_user_sgpr_kernarg_segment_ptr 1
  .amdhsa_system_sgpr_workgroup_id_x 1
.end_amdhsa_kernel
"""
    return txt

if __name__=="__main__":
    import argparse
    ap=argparse.ArgumentParser()
    ap.add_argument('--stop',type=int,default=99)
    ap.add_argument('--prof',action='store_true')
    ap.add_argument('-o',default='interleave_layers__sliding_local_dilated__geglu_ffn__prompt.s')
    a=ap.parse_args()
    cfg.stop_after=a.stop
    cfg.prof=a.prof
    open(a.o,'w').write(build())
    print("wrote",a.o)
```

```python
import sys, os
sys.path.insert(0, os.path.dirname(os.path.abspath(__file__)))
from core import *

KNAME = "interleave_layers__sliding_local_dilated__geglu_ffn__prompt_kernel"

TEAMSZ=0x200000
FLAGS=0x0000; IDS=0x0100; HFLAGS=0x0200; EPOCH=0x0300; PF0=0x0400
STATS=0x1000
SBUF=0
HSTATS=0x11000
HALOX=0x18000
XB=[0x30000,0x30000,0x30000,0x30000]
OB=[0xB0000,0xB0000]
HB=[0xF0000,0xF0000]
WS_USED=2*TEAMSZ
TILE=32768; HTILE=172*512
RING=0; SLOT=16384; NSLOT=8
SCR=131072
KBUF=SCR; VBUF=SCR+9216
CST=158720
MISC=163328
LDS_BYTES=163840
ZERO8=MISC+16

C_GELU=-2.0*0.7978845608028654*1.4426950408889634
def f2u(x):
    import struct
    return struct.unpack('<I',struct.pack('<f',x))[0]
def hexf(x): return "0x%08x"%f2u(x)

PROF=0x1A0000
class Cfg:
    prof = False
    prof_bar = True
    realtime = False
    stop_after = 99
    LA = 5
    NA = 6
    budget = 3.0
    timeout = 1<<18
    pv = 26
    retain = True
    codepf = True
    earlytouch = False
    EB = 64
    episplit = False
    P3AHEAD = 10
    cwarm2 = False
    chalo = True
    touchL1 = False
    touchL1o = True
    ret3031 = True
    ntw3 = ''
    cwarm = False
    dbg_noepi = False
    pairwait = True
    ntact = ''
    earlywarm = True
    startord = 'F'
    bd2 = 11
    warmP3 = True
    p0fast = False
    ba2 = 20
    prof_kv = False
    prof_h = False
    warmstart = True
    hpollA = 1
    bx = 44
    dbg_delay = 0
    dbg_nohp = False
    dbg_nohl = False
    hsleep = 8
    csleep = 0
    pretouch = True
    tlbwarm = True
    halowarm = True
    s0 = 'mid'
    nt = ''
    winE = 3
    win = 3
    winL = 16
    win0 = 4
    warm = True
    PF = 6
    PF2 = 6
    PF2MAX = 28

cfg=Cfg()

def srd(S, r, lo, hi, size):
    S(f"s_mov_b32 s{r}, s{lo}")
    S(f"s_mov_b32 s{r+1}, s{hi}")
    S(f"s_mov_b32 s{r+2}, {size}")
    S(f"s_mov_b32 s{r+3}, 0x00020000")

def csel(S, dst, a, b):
    S(f"s_mov_b32 s{dst}, {a}")
    S(f"s_cselect_b32 s{dst}, s{dst}, {b}")

def mov64(S, r, val):
    S(f"s_mov_b32 s{r}, 0x{val & 0xffffffff:08x}")
    S(f"s_mov_b32 s{r+1}, 0x{(val>>32) & 0xffffffff:08x}")

def stamp(S, idx, layer_s=None, pv=None, real=False):
    if not cfg.prof: return
    pv = cfg.pv if pv is None else pv
    S.smem("s_memrealtime s[90:91]" if (real or cfg.realtime) else "s_memtime s[90:91]")
    S.force_wait(lg=True)
    if layer_s is not None:
        S(f"s_lshl_b32 s93, s{layer_s}, 8")
        S(f"s_add_u32 s93, s93, s92")
        S(f"s_add_u32 s93, s93, {idx*4}")
    else:
        S(f"s_add_u32 s93, s92, {idx*4}")
    S("s_mov_b64 exec, 1")
    S(f"v_mov_b32 v{pv}, s90")
    S(f"v_mov_b32 v{pv+1}, s93")
    S(f"buffer_store_dword v{pv}, v{pv+1}, s[28:31], 0 offen")
    S("s_mov_b64 exec, -1")

def hstamp(S, idx):
    if not cfg.prof: return
    S.smem("s_memtime s[96:97]")
    S.force_wait(lg=True)
    S(f"s_add_u32 s99, s98, {idx*4}")
    S("s_mov_b64 exec, 1")
    S("v_mov_b32 v30, s96")
    S("v_mov_b32 v31, s99")
    S("buffer_store_dword v30, v31, s[28:31], 0 offen")
    S("s_mov_b64 exec, -1")

def poll(S, voff, vtmp, srdreg, s_expect, s_mask, s_cnt, s_tmp, span=16):
    L=S.newlabel('Lpoll'); D=S.newlabel('Lpdone')
    S(f"s_mov_b32 s{s_cnt}, 0")
    S.label(L)
    S(f"buffer_load_dword v{vtmp}, v{voff}, s[{srdreg}:{srdreg+3}], 0 offen sc1")
    S(f"s_add_u32 s{s_cnt}, s{s_cnt}, 1")
    S.force_wait(vm=True)
    S(f"v_subrev_u32 v{vtmp}, s{s_expect}, v{vtmp}")
    S(f"v_cmp_gt_u32 vcc, {span}, v{vtmp}")
    S(f"s_and_b64 s[{s_tmp}:{s_tmp+1}], vcc, s[{s_mask}:{s_mask+1}]")
    S(f"s_cmp_eq_u64 s[{s_tmp}:{s_tmp+1}], s[{s_mask}:{s_mask+1}]")
    S(f"s_cbranch_scc1 {D}")
    if cfg.csleep: S(f"s_sleep {cfg.csleep}")
    S(f"s_cmp_lt_u32 s{s_cnt}, {cfg.timeout}")
    S(f"s_cbranch_scc1 {L}")
    S.label(D)
    S("s_nop 1")

def stats_to_frag(S_emit, st, vt, nm, out_rstd=None, gelu=None, s_c=None):
    ops=[]
    a=lambda t,c=1: ops.append((c,t))
    idx_s=[st[2*i] for i in range(16)]; idx_q=[st[2*i+1] for i in range(16)]
    for arr in (idx_s, idx_q):
        n=16
        cur=list(arr)
        while len(cur)>1:
            nxt=[]
            for i in range(0,len(cur),2):
                a(f"v_add_f32 v{cur[i]}, v{cur[i]}, v{cur[i+1]}")
                nxt.append(cur[i])
            cur=nxt
    s=idx_s[0]; q=idx_q[0]
    t0,t1,t2,t3=vt
    a(f"v_mul_f32 v{t0}, {hexf(1/512)}, v{s}")
    a(f"v_mul_f32 v{t1}, {hexf(1/512)}, v{q}")
    a(f"v_fma_f32 v{t1}, -v{t0}, v{t0}, v{t1}")
    a(f"v_max_f32 v{t1}, 0, v{t1}")
    a(f"v_cvt_pk_bf16_f32 v{t2}, v{t0}, v{t0}")
    a(f"v_cvt_pk_bf16_f32 v{t1}, v{t1}, v{t1}")
    a(f"v_xor_b32 v{nm}, 0x80008000, v{t2}")
    a(f"v_and_b32 v{t1}, 0xffff0000, v{t1}")
    a(f"v_and_b32 v{nm+1}, 0xffff, v{nm}")
    a(f"v_add_f32 v{t1}, {hexf(1e-5)}, v{t1}")
    a(f"v_cvt_pk_bf16_f32 v{t1}, v{t1}, v{t1}")
    a(f"v_and_b32 v{t1}, 0xffff0000, v{t1}")
    a(f"v_sqrt_f32 v{t1}, v{t1}",2)
    a(f"v_cvt_pk_bf16_f32 v{t1}, v{t1}, v{t1}")
    a(f"v_and_b32 v{t1}, 0xffff0000, v{t1}")
    if gelu is None:
        a(f"v_rcp_f32 v{out_rstd}, v{t1}",2)
    else:
        A,B,inv=gelu
        a(f"v_rcp_f32 v{t0}, v{t1}",2)
        a(f"v_mul_f32 v{inv}, v{t1}, v{t1}")
        a(f"v_mul_f32 v{A}, {hexf(C_GELU)}, v{t0}")
        a(f"v_mul_f32 v{t2}, v{t0}, v{t0}")
        a(f"v_mul_f32 v{t2}, {hexf(0.044715)}, v{t2}")
        a(f"v_mul_f32 v{B}, v{A}, v{t2}")
    return ops

def mfma_stream(S, steps, fillers, ring_base=40):
    LA=cfg.LA; NA=cfg.NA
    n=len(steps)
    atok=[None]*n; areg=[None]*n
    ringi=[0]
    def issue_reads(i):
        st=steps[i]
        if st.get('pre_reads'): st['pre_reads'](S)
        a=st['a']
        if a[0]=='tr':
            r=ring_base+4*(ringi[0]%NA); ringi[0]+=1
            S(f"ds_read_b64_tr_b16 v[{r}:{r+1}], v{a[1]} offset:{a[2]}")
            atok[i]=S(f"ds_read_b64_tr_b16 v[{r+2}:{r+3}], v{a[1]} offset:{a[2]+st.get('a2',256)}")
            areg[i]=r
        else:
            areg[i]=a[1]
    fi=[0]
    def emit_fill(i, budget):
        used=0
        while fi[0]<len(fillers):
            ms,cost,f=fillers[fi[0]]
            if ms>i: break
            if used+cost>budget+1e-9 and used>0: break
            if used>=budget: break
            if callable(f): f(S)
            else: S(f)
            used+=cost; fi[0]+=1
    for i in range(min(LA,n)): issue_reads(i)
    for i in range(n):
        st=steps[i]
        if st.get('need_fill') is not None:
            while fi[0]<st['need_fill']:
                ms,cost,f=fillers[fi[0]]
                if callable(f): f(S)
                else: S(f)
                fi[0]+=1
        toks=[atok[i]]
        if cfg.pairwait and i%2==0 and i+1<n and atok[i+1] is not None: toks.append(atok[i+1])
        if st['a'][0]=='reg' and st['a'][2] is not None: toks.append(st['a'][2]())
        if st.get('btok'): toks.append(st['btok']())
        S.wait(*toks)
        shape='32x32x16' if st.get('shape',32)==32 else '16x16x32'
        nacc=16 if shape=='32x32x16' else 4
        S(f"v_mfma_f32_{shape}_bf16 v[{st['acc']}:{st['acc']+nacc-1}], v[{areg[i]}:{areg[i]+3}], v[{st['b']}:{st['b']+3}], {st['c']}")
        if i+LA<n: issue_reads(i+LA)
        b=cfg.budget
        if st.get('post'):
            st['post'](S); b-=st.get('postcost',1)
        if st.get('after'): st['after'](S); b-=1
        emit_fill(i,b)
    while fi[0]<len(fillers):
        ms,cost,f=fillers[fi[0]]
        if callable(f): f(S)
        else: S(f)
        fi[0]+=1

PBAR={'J1':28,'J2':30,'J3':32,'J4':34,'J5':36,'J6':38,'J7':40,'K1':44,'K2':46,'K3':48,'K4':50,'K5':52,'Bb':54,'Ba2':58}
def pbar(S,name):
    if cfg.prof and cfg.prof_bar:
        stamp(S,PBAR[name],48); S.barrier(name); stamp(S,PBAR[name]+1,48)
    else:
        S.barrier(name)

def accs(base): return f"v[{base}:{base+15}]"

def gen_prologue():
    S=Stream('P')
    S("s_cmp_ge_u32 s2, 256")
    S("s_cbranch_scc1 L_end")
    S.smem("""s_load_dwordx4 s[4:7], s[0:1], 0
s_load_dwordx2 s[8:9], s[0:1], 16
s_load_dwordx4 s[12:15], s[0:1], 32
s_load_dwordx2 s[10:11], s[0:1], 48
s_load_dwordx2 s[16:17], s[0:1], 56
s_load_dwordx2 s[18:19], s[0:1], 72""")
    S("v_lshrrev_b32 v1, 6, v0")
    S("v_and_b32 v0, 63, v0")
    S("v_readfirstlane_b32 s20, v1")
    S("s_and_b32 s25, s2, 7")
    S("s_lshr_b32 s26, s2, 3")
    S("s_lshr_b32 s27, s26, 4")
    S("s_lshl_b32 s21, s25, 1")
    S("s_add_u32 s21, s21, s27")
    S("s_and_b32 s22, s26, 15")
    S("s_lshl_b32 s25, s21, 21")
    S.items.append(Ins("s_waitcnt lgkmcnt(0)"))
    S("s_add_u32 s18, s18, s25")
    S("s_addc_u32 s19, s19, 0")
    S(f"s_mov_b32 s25, {EPOCH}")
    S(f"s_mov_b32 s26, {EPOCH+TEAMSZ}")
    S.smem("""s_load_dword s23, s[18:19], s25
s_load_dword s24, s[18:19], s26""")
    srd(S,28,18,19,WS_USED)
    if cfg.prof:
        S('s_lshl_b32 s92, s22, 3'); S('s_add_u32 s92, s92, s20'); S('s_lshl_b32 s92, s92, 9'); S(f's_add_u32 s92, s92, {PROF}')
    S("v_lshlrev_b32 v1, 4, v0")
    if cfg.codepf:
        S("s_getpc_b64 s[96:97]")
        S.label("L_pc")
        S("s_lshr_b32 s25, s2, 3")
        S("s_lshl_b32 s25, s25, 3")
        S("s_add_u32 s25, s25, s20")
        S("s_and_b32 s25, s25, 63")
        S("s_lshl_b32 s25, s25, 10")
        S("v_add_u32 v2, s25, v1")
        S("v_min_u32 v2, CODE_LAST, v2")
        S("global_load_dwordx4 v[252:255], v2, s[96:97]")
    S("s_cmp_ge_u32 s20, 4")
    S("s_cbranch_scc1 L_helper")
    return S

NITEMS=35
def slot_imm(i):
    return (i*SLOT)

def gen_C():
    S=Stream('C')
    S("s_nop 4")
    S("s_setprio 2")
    srd(S,40,4,5,2048*1024)
    srd(S,44,16,17,2048*1024)
    srd(S,32,18,19,0)
    srd(S,36,18,19,WS_USED)
    S("s_and_b32 s50, s20, 1")
    S("s_lshr_b32 s51, s20, 1")
    S("s_lshr_b32 s52, s22, 3")
    S("s_and_b32 s53, s22, 7")
    S("s_mov_b32 s54, s20")
    S("s_lshl_b32 s55, s52, 1")
    S("s_add_u32 s55, s55, s50")
    S("s_lshl_b32 s98, s21, 2")
    S("s_add_u32 s98, s98, s55")
    S("v_lshrrev_b32 v2, 5, v0")
    S("v_lshlrev_b32 v2, 9, v2")
    S("v_and_b32 v7, 15, v0")
    S("v_lshrrev_b32 v7, 2, v7")
    S("v_lshl_add_u32 v2, v7, 6, v2")
    S("v_bfe_u32 v7, v0, 4, 1")
    S("v_lshl_add_u32 v2, v7, 5, v2")
    S("v_and_b32 v7, 3, v0")
    S("v_lshl_add_u32 v2, v7, 3, v2")
    S(f"s_mov_b32 s57, {FLAGS}")
    S("v_lshlrev_b32 v3, 2, v0")
    S("v_add_u32 v3, s57, v3")
    S("s_lshl_b32 s58, s22, 4")
    S("s_lshl_b32 s59, s20, 2")
    S("s_add_u32 s58, s58, s59")
    S("s_add_u32 s58, s58, s57")
    S("v_mov_b32 v4, s58")
    for r in (30,31,34,35,38,39): S(f"v_mov_b32 v{r}, 0")
    stamp(S,0)
    if cfg.tlbwarm:
        S("v_mov_b32 v8, 0")
        S("s_mov_b64 exec, 1")
        S("buffer_load_dword v120, v8, s[44:47], 0 offen")
        S(f"buffer_load_dword v121, v8, s[28:31], 0 offen offset:{0x800}")
        S("s_mov_b64 exec, -1")
    S("v_lshrrev_b32 v8, 2, v0")
    S("v_and_b32 v9, 3, v0")
    S("s_lshl_b32 s57, s22, 6")
    S("v_lshlrev_b32 v10, 4, v9")
    S("v_add_u32 v10, s57, v10")
    S("s_lshl_b32 s57, s21, 7")
    S("s_lshl_b32 s58, s20, 5")
    S("s_add_u32 s58, s58, s57")
    S("v_add_u32 v11, s58, v8")
    S("v_lshl_add_u32 v11, v11, 10, v10")
    tA=S("buffer_load_dwordx4 v[16:19], v11, s[40:43], 0 offen")
    S("v_add_u32 v12, 0x4000, v11")
    tB=S("buffer_load_dwordx4 v[20:23], v12, s[40:43], 0 offen")
    S("s_sub_i32 s59, s57, 16")
    S("v_add_u32 v12, s59, v8")
    S("v_max_i32 v12, 0, v12")
    S("v_lshl_add_u32 v12, v12, 10, v10")
    tH=S("buffer_load_dwordx4 v[24:27], v12, s[40:43], 0 offen")
    if cfg.p0fast:
        S("s_lshl_b32 s57, s54, 15"); S("s_lshl_b32 s58, s22, 11"); S("s_add_u32 s57, s57, s58")
        S(f"s_add_u32 s59, s58, {HALOX}"); S(f"s_add_u32 s57, s57, {XB[0]}")
        S("buffer_load_dword v100, v1, s[28:31], s57 offen"); S("buffer_load_dword v100, v1, s[28:31], s57 offen offset:1024")
        S("buffer_load_dword v100, v1, s[28:31], s59 offen"); S("buffer_load_dword v100, v1, s[28:31], s59 offen offset:1024")
        S("s_lshr_b32 s60, s22, 1"); S("s_lshl_b32 s60, s60, 9")
        S("s_lshl_b32 s57, s54, 12"); S("s_add_u32 s57, s57, s60"); S(f"s_add_u32 s57, s57, {STATS}"); S(f"s_add_u32 s59, s60, {HSTATS}")
        S("s_mov_b64 exec, 0xffffffff")
        S("buffer_load_dword v100, v1, s[28:31], s57 offen"); tH=S("buffer_load_dword v100, v1, s[28:31], s59 offen")
        S("s_mov_b64 exec, -1")
    if cfg.cwarm2:
        for (r,lo,hi,nb) in ((72,8,9,512*512*2),(76,12,13,512*1376*2),(80,14,15,512*1376*2),(84,10,11,1376*512*2)):
            srd(S,r,lo,hi,nb)
            kb=-(-nb//1024); per=-(-kb//1024)
            S("s_lshl_b32 s57, s2, 2"); S("s_add_u32 s57, s57, s20")
            S(f"s_mul_i32 s57, s57, {per*1024}")
            for c in range(per): S(f"buffer_load_dword v100, v1, s[{r}:{r+3}], s57 offen offset:{c*1024}")
    S.items.append(Ins("s_waitcnt lgkmcnt(0)"))
    stamp(S,56,pv=102)
    S("s_getreg_b32 s60, hwreg(HW_REG_XCC_ID)")
    S("s_and_b32 s60, s60, 7")
    S("s_add_u32 s60, s60, s23")
    S("s_add_u32 s89, s60, 16")
    S(f"s_mov_b32 s57, {IDS}")
    S("s_lshl_b32 s58, s22, 2")
    S("s_add_u32 s58, s58, s57")
    S("v_mov_b32 v14, s58")
    S("v_mov_b32 v15, s89")
    S("s_mov_b64 exec, 1")
    S("buffer_store_dword v15, v14, s[28:31], 0 offen sc1")
    S("s_mov_b64 exec, -1")
    if cfg.s0=='early': S.barrier("S0")
    S.wait(tH)
    stamp(S,57,pv=102)
    if cfg.p0fast:
        S(f"s_mov_b32 s57, {IDS}")
        S("v_lshlrev_b32 v101, 2, v0")
        S("v_add_u32 v101, s57, v101")
        tid=S("buffer_load_dword v103, v101, s[28:31], 0 offen sc1")
    S("v_mov_b32 v7, 0x3f803f80")
    outs=[]
    for gi,(base) in enumerate((16,20,24)):
        sm=64+2*gi; sq=65+2*gi
        S(f"v_dot2_f32_bf16 v{sm}, v{base}, v7, 0")
        S(f"v_dot2_f32_bf16 v{sq}, v{base}, v{base}, 0")
        for d in range(1,4):
            S(f"v_dot2_f32_bf16 v{sm}, v{base+d}, v7, v{sm}")
            S(f"v_dot2_f32_bf16 v{sq}, v{base+d}, v{base+d}, v{sq}")
    for qp in ("[1,0,3,2]","[2,3,0,1]"):
        for r in range(64,70):
            S(f"v_add_f32_dpp v{r}, v{r}, v{r} quad_perm:{qp} row_mask:0xf bank_mask:0xf")
    mov64(S,66,0x2222222222222222)
    for gi in range(3):
        S(f"v_cndmask_b32 v{72+gi}, v{64+2*gi}, v{65+2*gi}, s[66:67]")
    if cfg.p0fast:
        S.wait(tid)
        mov64(S,64,0xFFFF)
        S("v_cmp_eq_u32 vcc, s89, v103")
        S("s_and_b64 s[66:67], vcc, s[64:65]")
        S("s_cmp_eq_u64 s[66:67], s[64:65]")
        S(f"s_cselect_b32 s34, {WS_USED}, 0")
        S(f"s_cselect_b32 s38, 0, {WS_USED}")
        if os.environ.get('FORCE_SLOW'):
            S("s_mov_b32 s34, 0"); S(f"s_mov_b32 s38, {WS_USED}")
    S("v_lshlrev_b32 v12, 9, v9")
    S("v_lshl_add_u32 v12, v8, 4, v12")
    S("v_lshlrev_b32 v13, 2, v9")
    S("v_lshl_add_u32 v13, v8, 4, v13")
    S("s_lshl_b32 s57, s54, 15")
    S("s_lshl_b32 s58, s22, 11")
    S("s_add_u32 s57, s57, s58")
    S(f"s_add_u32 s57, s57, {XB[0]}")
    S(f"s_add_u32 s59, s58, {HALOX}")
    def st2(data, voff, soff, imm, w='x4'):
        S(f"buffer_store_dword{w} {data}, v{voff}, s[32:35], s{soff} offen offset:{imm}")
        S(f"buffer_store_dword{w} {data}, v{voff}, s[36:39], s{soff} offen offset:{imm} sc1")
    def st1(data, voff, soff, imm, w='x4'):
        S(f"buffer_store_dword{w} {data}, v{voff}, s[28:31], s{soff} offen offset:{imm} sc1")
    stP=st2 if cfg.p0fast else st1
    stP("v[16:19]",12,57,0); stP("v[20:23]",12,57,256); stP("v[24:27]",12,59,256)
    S("s_lshr_b32 s60, s22, 1")
    S("s_lshl_b32 s60, s60, 9")
    S("s_and_b32 s61, s22, 1")
    S("s_lshl_b32 s61, s61, 3")
    S("s_add_u32 s60, s60, s61")
    S("s_lshl_b32 s57, s54, 12")
    S("s_add_u32 s57, s57, s60")
    S(f"s_add_u32 s57, s57, {STATS}")
    S(f"s_add_u32 s59, s60, {HSTATS}")
    mov64(S,66,0x3333333333333333)
    S("s_mov_b64 exec, s[66:67]")
    stP("v72",13,57,0,''); stP("v73",13,57,256,''); stP("v74",13,59,256,'')
    S("s_mov_b64 exec, -1")
    stamp(S,58,pv=102)
    S("s_mov_b32 s49, 1")
    def set_flag():
        S.force_wait(vm=True)
        S("s_add_u32 s57, s23, s49")
        S("v_mov_b32 v7, s57")
        S("s_mov_b64 exec, 1")
        S("buffer_store_dword v7, v4, s[32:35], 0 offen")
        S("buffer_store_dword v7, v4, s[36:39], 0 offen sc1")
        S("s_mov_b64 exec, -1")
    if cfg.s0=='mid': S.barrier("S0")
    S.force_wait(vm=True)
    S("s_add_u32 s57, s23, s49")
    S("v_mov_b32 v7, s57")
    S("s_lshl_b32 s57, s20, 6")
    S("s_lshl_b32 s58, s22, 2")
    S("s_add_u32 s57, s57, s58")
    S(f"s_add_u32 s57, s57, {PF0}")
    S("v_mov_b32 v8, s57")
    S("s_mov_b64 exec, 1")
    if cfg.p0fast:
        S("buffer_store_dword v7, v8, s[32:35], 0 offen")
        S("buffer_store_dword v7, v8, s[36:39], 0 offen sc1")
    else:
        S("buffer_store_dword v7, v8, s[28:31], 0 offen sc1")
    S("s_mov_b64 exec, -1")
    if cfg.s0=='late': S.barrier("S0")
    stamp(S,1)
    if cfg.cwarm:
        for (r,lo,hi,nb) in ((72,8,9,512*512*2),(76,12,13,512*1376*2),(80,14,15,512*1376*2),(84,10,11,1376*512*2)):
            srd(S,r,lo,hi,nb)
            kb=-(-nb//1024); per=-(-kb//1024)
            S("s_lshl_b32 s57, s2, 2"); S("s_add_u32 s57, s57, s20")
            S(f"s_mul_i32 s57, s57, {per*1024}")
            for c in range(per): S(f"buffer_load_dword v100, v1, s[{r}:{r+3}], s57 offen offset:{c*1024}")
        S("s_lshl_b32 s57, s20, 15"); S("s_lshl_b32 s58, s22, 11"); S("s_add_u32 s57, s57, s58"); S(f"s_add_u32 s57, s57, {OB[0]}")
        for c in range(2): S(f"buffer_load_dword v100, v1, s[28:31], s57 offen offset:{c*1024}")
        S("s_lshl_b32 s57, s22, 3"); S("s_mul_hi_u32 s57, s57, 0x55555556"); S("s_lshl_b32 s57, s57, 11")
        S(f"s_mul_i32 s58, s20, {HTILE}"); S("s_add_u32 s57, s57, s58"); S(f"s_add_u32 s57, s57, {HB[0]}")
        for c in range(6):
            S(f"buffer_load_dword v100, v1, s[28:31], s57 offen offset:{(c%4)*1024}")
            if c==3: S("s_add_u32 s57, s57, 4096")
    if cfg.stop_after==0:
        S("s_branch L_fin"); return S
    S("s_mov_b32 s94, 0")
    S("s_mov_b32 s48, 0")
    S.label("L_layer")
    S("s_nop 4")
    S.vm_done=S.vm_issued; S.lg_done=S.lg_issued
    S.force_wait(vm=True,lg=True)
    S(f"s_mul_i32 s56, s48, {(NITEMS*SLOT)&0x1ffff}")
    def layer_offsets():
        S("s_cmp_eq_u32 s48, 0")
        csel(S,70,XB[0],XB[2])
        csel(S,71,STATS,STATS+2*SBUF)
        csel(S,72,OB[0],OB[1])
        csel(S,73,XB[1],XB[3])
        csel(S,74,STATS+SBUF,STATS+SBUF)
        csel(S,75,HB[0],HB[1])
    def slot(dst_s, i, extra_s=None, extra_imm=0):
        S(f"s_add_u32 s{dst_s}, s56, {i*SLOT}")
        if extra_s is not None: S(f"s_add_u32 s{dst_s}, s{dst_s}, s{extra_s}")
        S(f"s_and_b32 s{dst_s}, s{dst_s}, 0x1ffff")
        if extra_imm: S(f"s_add_u32 s{dst_s}, s{dst_s}, {extra_imm}")
    def setaddr(vreg, i, extra_s=None, add_s=None):
        def f(S):
            slot(57,i,extra_s)
            if add_s is not None: S(f"s_add_u32 s57, s57, s{add_s}")
            S(f"v_add_u32 v{vreg}, s57, v2")
        return f
    def setaddr2(vreg, i, extra_s=None, add_s=None):
        def f(S):
            slot(57,i,extra_s)
            if add_s is not None: S(f"s_add_u32 s57, s57, s{add_s}")
            S(f"v_add_u32 v{vreg}, s57, v{12 if vreg==5 else 13}")
        return f
    def expect():
        S("s_add_u32 s68, s23, s49")
    def bump(): S("s_add_u32 s49, s49, 1")

    Lv1=S.newlabel('Lp1v'); Ld1=S.newlabel('Lp1d'); Lsp=S.newlabel('Lp1s')
    S("s_cmp_eq_u32 s48, 0")
    S(f"s_cbranch_scc0 {Lv1}")
    S("s_lshl_b32 s57, s20, 6")
    S(f"s_add_u32 s57, s57, {PF0}")
    S("s_add_u32 s66, s18, s57")
    S("s_addc_u32 s67, s19, 0")
    S("s_add_u32 s68, s23, 1")
    S("s_mov_b32 s69, 0")
    S.label(Lsp)
    S.smem("s_load_dwordx16 s[72:87], s[66:67], 0 glc")
    S("s_add_u32 s69, s69, 1")
    S.items.append(Ins("s_waitcnt lgkmcnt(0)"))
    for i in range(16): S(f"s_xor_b32 s{72+i}, s{72+i}, s68")
    for st_ in (8,4,2,1):
        for i in range(st_): S(f"s_or_b32 s{72+i}, s{72+i}, s{72+i+st_}")
    S("s_cmp_eq_u32 s72, 0")
    S(f"s_cbranch_scc1 {Ld1}")
    S("s_sleep 2")
    S(f"s_cmp_lt_u32 s69, {cfg.timeout}")
    S(f"s_cbranch_scc1 {Lsp}")
    S(f"s_branch {Ld1}")
    S.label(Lv1)
    S("s_mov_b32 s58, 0x55555555")
    S("s_lshl_b32 s58, s58, s50")
    S("s_cmp_eq_u32 s51, 0")
    S("s_cselect_b32 s64, s58, 0")
    S("s_cselect_b32 s65, 0, s58")
    expect()
    poll(S,3,7,28,68,64,69,66)
    if cfg.chalo:
        S("s_cmp_lg_u32 s20, 0")
        S(f"s_cbranch_scc1 {Ld1}")
        S("s_cmp_eq_u32 s21, 0")
        S(f"s_cbranch_scc1 {Ld1}")
        S("v_lshlrev_b32 v8, 2, v0")
        S(f"v_add_u32 v8, {HFLAGS+64}, v8")
        mov64(S,64,0xFFFF)
        S("s_add_u32 s68, s23, 1")
        poll(S,8,7,28,68,64,69,66,span=1)
    S.label(Ld1)
    S("s_nop 1")
    layer_offsets()
    S.vm_done=S.vm_issued-0
    stamp(S,2,48)
    S("s_lshl_b32 s78, s54, 15")
    S("s_add_u32 s78, s78, s70")
    S("s_lshl_b32 s79, s54, 12")
    S("s_add_u32 s79, s79, s71")
    btok={}
    def ldfrag(s, sbase=78):
        def f(S):
            if s%4==0 and s>0: S(f"s_add_u32 s{sbase}, s{sbase}, 4096")
            btok[s]=S(f"buffer_load_dwordx4 v[{128+4*(s%32)}:{131+4*(s%32)}], v1, s[28:31], s{sbase} offen offset:{(s%4)*1024} sc1{cfg.ntact}")
        return f
    PF=cfg.PF
    for s in range(PF): ldfrag(s)(S)
    S("v_and_b32 v7, 31, v0")
    S("v_lshlrev_b32 v7, 4, v7")
    st_regs=list(range(96,128))
    stt={}
    def ldstat(u):
        def f(S): stt[u]=S(f"buffer_load_dwordx4 v[{96+4*u}:{99+4*u}], v7, s[28:31], s79 offen offset:{u*512} sc1")
        return f
    def load_sched():
        q=[('f',i) for i in range(PF,PF+6)]+[('s',u) for u in range(8)]+[('f',i) for i in range(PF+6,32)]
        return q
    def mkpost(item):
        k,i=item
        return (ldfrag(i),1.5 if i%4==0 else 1) if k=='f' else (ldstat(i),1)
    S.barrier("Ba")
    stamp(S,3,48)
    AK,AV,AQ=64,80,96
    steps=[]; fill=[]; lq=load_sched()
    for s in range(32):
        for t,(acc,vr,it) in enumerate(((AK,5,0),(AV,6,1))):
            d=dict(acc=acc,c=('0' if s==0 else accs(acc)),a=('tr',vr,(s%16)*1024),b=128+4*s,btok=(lambda s=s: btok[s]))
            if s%16==0: d['pre_reads']=setaddr(vr, it+2*(s//16))
            if lq:
                d['post'],d['postcost']=mkpost(lq.pop(0))
            steps.append(d)
    steps[cfg.ba2]['after']=(lambda S: pbar(S,"Ba2"))
    if cfg.prof and cfg.prof_kv:
        for k,ix in ((3,59),(11,60),(19,61),(35,62),(51,63)):
            steps[k]['after']=(lambda S,ix=ix: stamp(S,ix,48))
    def waitst(S): S.wait(stt[7])
    fill.append((30,0,waitst))
    for c,t in stats_to_frag(S, st_regs, (8,9,10,11), 28, out_rstd=12): fill.append((30,c,t))
    nstat_fill=len(fill)
    cstok={}
    def after_kv(S):
        pbar(S,"Bb")
        S(f"v_lshlrev_b32 v13, 3, v0")
        S(f"v_add_u32 v13, {CST}, v13")
        cstok['k']=S(f"ds_read_b64 v[32:33], v13 offset:{0*512}")
        cstok['v']=S(f"ds_read_b64 v[36:37], v13 offset:{1*512}")
        if True:
            S(f"s_mov_b32 s57, {IDS}")
            S("v_lshlrev_b32 v27, 2, v0")
            S("v_add_u32 v27, s57, v27")
            cstok['id']=S("buffer_load_dword v127, v27, s[28:31], 0 offen sc1")
    steps[-1]['after']=after_kv
    nkv=len(steps)
    qsteps=[]
    for s in range(32):
        d=dict(acc=AQ,c=('0' if s==0 else accs(AQ)),a=('tr',5,(s%16)*1024),b=128+4*s)
        if s%16==0: d['pre_reads']=setaddr(5, 4+s//16)
        qsteps.append(d)
    qsteps[0]['need_fill']=nstat_fill
    corrK=dict(acc=AK,c=accs(AK),a=('reg',32,lambda: cstok['k']),b=28)
    corrV=dict(acc=AV,c=accs(AV),a=('reg',36,lambda: cstok['v']),b=28)
    def rdq(S): cstok['q']=S(f"ds_read_b64 v[32:33], v13 offset:{2*512}")
    corrV['post']=rdq
    corrQ=dict(acc=AQ,c=accs(AQ),a=('reg',32,lambda: cstok['q']),b=28)
    steps += qsteps[:4]+[corrK,corrV]+qsteps[4:]+[corrQ]
    kvdone=nkv+4+2+3
    S_k=[]
    for hd in range(2):
        for i in range(8):
            fill.append((kvdone,1,f"v_mul_f32 v{AK+8*hd+i}, v{AK+8*hd+i}, v12"))
        for i in range(4):
            fill.append((kvdone,1,f"v_cvt_pk_bf16_f32 v{16+4*hd+i}, v{AK+8*hd+2*i}, v{AK+8*hd+2*i+1}"))
    def kvaddr(S):
        S("v_and_b32 v14, 31, v0")
        S("s_lshl_b32 s57, s20, 5")
        S("s_add_u32 s57, s57, 16")
        S("v_add_u32 v14, s57, v14")
        S("v_lshlrev_b32 v14, 4, v14")
        S(f"v_add_u32 v14, {SCR}, v14")
        S("v_lshrrev_b32 v15, 5, v0")
        S("v_mul_u32_u24 v15, 2304, v15")
        S("v_add_u32 v24, v14, v15")
        S("v_add_u32 v25, v24, v15")
    fill.append((kvdone,7,kvaddr))
    for hd in range(2):
        fill.append((kvdone,1,f"ds_write_b128 v24, v[{16+4*hd}:{19+4*hd}] offset:{KBUF-SCR+hd*4608}"))
    for q in range(4):
        for i in range(4):
            fill.append((kvdone,1,f"v_mul_f32 v{AV+4*q+i}, v{AV+4*q+i}, v12"))
        hd,part=q//2,q%2
        fill.append((kvdone,1,f"ds_write_b128 v25, v[{AV+4*q}:{AV+4*q+3}] offset:{VBUF-SCR+hd*9216+part*2304}"))
    mfma_stream(S,steps,fill)
    stamp(S,4,48)
    for i in range(16): S(f"v_mul_f32 v{AQ+i}, v{AQ+i}, v12")
    for i in range(8): S(f"v_cvt_pk_bf16_f32 v{112+i}, v{AQ+2*i}, v{AQ+2*i+1}")
    if True:
        Lok=S.newlabel('Lidok'); Lrt=S.newlabel('Lidretry')
        S.wait(cstok['id'])
        mov64(S,64,0xFFFF)
        S("s_add_u32 s68, s23, 16")
        S("v_subrev_u32 v126, s68, v127")
        S("v_cmp_gt_u32 vcc, 8, v126")
        S("s_and_b64 s[66:67], vcc, s[64:65]")
        S("s_cmp_eq_u64 s[66:67], s[64:65]")
        S(f"s_cbranch_scc1 {Lok}")
        poll(S,27,126,28,68,64,69,66,span=8)
        S.label(Lok)
        S("s_sub_u32 s57, s89, s68")
        S("v_cmp_eq_u32 vcc, s57, v126")
        S("s_and_b64 s[66:67], vcc, s[64:65]")
        S("s_cmp_eq_u64 s[66:67], s[64:65]")
        S(f"s_cselect_b32 s34, {WS_USED}, 0")
        S(f"s_cselect_b32 s38, 0, {WS_USED}")
        if os.environ.get('FORCE_SLOW'):
            S("s_mov_b32 s34, 0"); S(f"s_mov_b32 s38, {WS_USED}")
    S("v_mov_b32 v126, s34"); S(f"v_mov_b32 v125, {MISC+32}")
    S("ds_write_b32 v125, v126")
    S.wait(lg_all=True)
    S.barrier("Bc")
    stamp(S,5,48)
    S("v_subrev_u32 v24, 224, v24")
    S("v_subrev_u32 v25, 224, v25")
    KU=[128+4*i for i in range(16)]
    ktok={}
    for hd in range(2):
        for w in range(8):
            if hd==1 and w==7: S.wait(ktok[(0,0)])
            ktok[(hd,w)]=S(f"ds_read_b128 v[{KU[hd*8+w]}:{KU[hd*8+w]+3}], v24 offset:{KBUF-SCR+hd*4608+(14-2*w)*16}")
    SA=[192+i for i in range(8)]; SB=[200+i for i in range(8)]
    for hd,SS in ((0,SA),(1,SB)):
        S.wait(ktok[(hd,7)])
        for d in range(4):
            for w in range(8):
                k=KU[hd*8+w]+d
                S(f"v_dot2_f32_bf16 v{SS[w]}, v{112+4*hd+d}, v{k}, {'0' if d==0 else 'v%d'%SS[w]}")
    VU0=[208+4*i for i in range(12)]+[64+4*i for i in range(4)]
    VU1=[128+4*i for i in range(16)]
    vtok={}
    def rdV(hd,VU,lo,hi):
        for idx in range(lo,hi):
            w,part=idx//2,idx%2
            vtok[(hd,w,part)]=S(f"ds_read_b128 v[{VU[idx]}:{VU[idx]+3}], v25 offset:{VBUF-SCR+hd*9216+part*2304+(14-2*w)*16}")
    rdV(0,VU0,0,14)
    for w in range(8): S(f"v_permlane32_swap_b32 v{SA[w]}, v{SB[w]}")
    for w in range(8): S(f"v_add_f32 v{SA[w]}, v{SA[w]}, v{SB[w]}")
    Lm=S.newlabel('Lnomask')
    S("s_lshl_b32 s57, s21, 2")
    S("s_add_u32 s57, s57, s20")
    S("s_cmp_lg_u32 s57, 0")
    S(f"s_cbranch_scc1 {Lm}")
    S("v_and_b32 v7, 31, v0")
    S(f"v_mov_b32 v26, {hexf(-4e9)}")
    for w in range(1,8):
        S(f"v_cmp_gt_u32 vcc, {2*w}, v7")
        S(f"v_cndmask_b32 v{SA[w]}, v{SA[w]}, v26, vcc")
    S.label(Lm)
    S("s_nop 1")
    cs=0.25*1.4426950408889634
    S(f"v_max3_f32 v26, v{SA[0]}, v{SA[1]}, v{SA[2]}")
    S(f"v_max3_f32 v27, v{SA[3]}, v{SA[4]}, v{SA[5]}")
    S(f"v_max3_f32 v26, v26, v{SA[6]}, v{SA[7]}")
    S(f"v_max_f32 v26, v26, v27")
    S(f"s_mov_b32 s57, {hexf(cs)}")
    S(f"v_mul_f32 v26, {hexf(-cs)}, v26")
    for w in range(8): S(f"v_fma_f32 v{SA[w]}, v{SA[w]}, s57, v26")
    for w in range(8): S(f"v_exp_f32 v{SA[w]}, v{SA[w]}")
    S.wait(vtok[(0,0,1)])
    rdV(0,VU0,14,16)
    S(f"v_add_f32 v26, v{SA[0]}, v{SA[1]}")
    S(f"v_add_f32 v27, v{SA[2]}, v{SA[3]}")
    S(f"v_add_f32 v15, v{SA[4]}, v{SA[5]}")
    S(f"v_add_f32 v14, v{SA[6]}, v{SA[7]}")
    S(f"v_add_f32 v26, v26, v27")
    S(f"v_add_f32 v15, v15, v14")
    S(f"v_add_f32 v26, v26, v15")
    S(f"v_rcp_f32 v26, v26")
    for w in range(8): S(f"v_mul_f32 v{SA[w]}, v{SA[w]}, v26")
    for w in range(8): S(f"v_mov_b32 v{SB[w]}, v{SA[w]}")
    for w in range(8): S(f"v_permlane32_swap_b32 v{SA[w]}, v{SB[w]}")
    def pv(hd,VU,P,cb=None):
        for w in range(8):
            p=P[w]; pe=p&~1
            sel = ("op_sel:[0,0,0] op_sel_hi:[1,0,1]","op_sel:[0,0] op_sel_hi:[1,0]") if p%2==0 else ("op_sel:[0,1,0] op_sel_hi:[1,1,1]","op_sel:[0,1] op_sel_hi:[1,1]")
            for part in range(2):
                S.wait(vtok[(hd,w,part)])
                u=VU[2*w+part]
                for hh in range(2):
                    o=96+8*hd+4*part+2*hh
                    if w==0:
                        S(f"v_pk_mul_f32 v[{o}:{o+1}], v[{u+2*hh}:{u+2*hh+1}], v[{pe}:{pe+1}] {sel[1]}")
                    else:
                        S(f"v_pk_fma_f32 v[{o}:{o+1}], v[{u+2*hh}:{u+2*hh+1}], v[{pe}:{pe+1}], v[{o}:{o+1}] {sel[0]}")
                if cb: cb(2*w+part)
    pv(0,VU0,SA,cb=lambda idx: (rdV(1,VU1,idx-2,idx-1) if idx>=2 else None))
    rdV(1,VU1,14,15)
    S.wait(vtok[(1,0,0)])
    rdV(1,VU1,15,16)
    pv(1,VU1,SB)
    for i in range(8): S(f"v_cvt_pk_bf16_f32 v{16+i}, v{96+2*i}, v{97+2*i}")
    for b in (16,20):
        S(f"v_permlane32_swap_b32 v{b}, v{b+2}")
        S(f"v_permlane32_swap_b32 v{b+1}, v{b+3}")
    S("s_lshl_b32 s57, s54, 15")
    S("s_lshl_b32 s58, s22, 11")
    S("s_add_u32 s57, s57, s58")
    S("s_add_u32 s57, s57, s72")
    st2("v[16:19]",1,57,0); st2("v[20:23]",1,57,1024)
    stamp(S,6,48)
    bump(); set_flag()
    stamp(S,7,48)
    if cfg.stop_after==1:
        S("s_branch L_fin"); return S

    def gemm2(name, nsteps, s_act, act_tile_bytes, khalf_bytes, s_res, mask_fn, items_fn, bars, s_out, s_sout, final):
        S.comment(f"======== {name} ========")
        AO,AT=64,80
        S("v_lshrrev_b32 v12, 5, v0"); S("v_lshlrev_b32 v12, 10, v12")
        S("v_bfe_u32 v13, v0, 2, 2"); S("v_lshl_add_u32 v12, v13, 7, v12")
        S("v_bfe_u32 v13, v0, 3, 1"); S("v_lshl_add_u32 v12, v13, 6, v12")
        S("v_bfe_u32 v13, v0, 4, 1"); S("v_lshl_add_u32 v12, v13, 5, v12")
        S("v_and_b32 v13, 3, v0"); S("v_lshl_add_u32 v12, v13, 3, v12")
        S("s_lshl_b32 s57, s51, 6")
        S("v_xor_b32 v12, s57, v12")
        S("v_xor_b32 v13, 64, v12")
        S("v_and_b32 v7, 31, v0")
        S("v_lshlrev_b32 v7, 4, v7")
        S("v_lshrrev_b32 v8, 5, v0")
        S("v_lshl_add_u32 v7, v8, 3, v7")
        S("s_lshl_b32 s57, s55, 15")
        S("s_lshl_b32 s58, s53, 12")
        S("s_add_u32 s57, s57, s58")
        S("s_lshl_b32 s58, s51, 11")
        S("s_add_u32 s80, s57, s58")
        S(f"s_add_u32 s57, s80, s{s_res}")
        rt=None
        if name=="P2":
            Lx=S.newlabel('Lresx'); Ly=S.newlabel('Lresd')
            S("s_cmp_eq_u32 s48, 0")
            S(f"s_cbranch_scc1 {Lx}")
        for q in range(4):
            rt=S(f"buffer_load_dwordx2 v[{16+2*q}:{17+2*q}], v7, s[28:31], s57 offen offset:{q*512} sc1")
        if name=="P2":
            S(f"s_branch {Ly}")
            S.label(Lx)
            S("v_and_b32 v9, 31, v0")
            S("s_lshl_b32 s57, s98, 5")
            S("v_add_u32 v9, s57, v9")
            S("v_lshlrev_b32 v9, 10, v9")
            S("v_lshl_add_u32 v9, v8, 3, v9")
            S("s_lshl_b32 s57, s53, 7")
            S("s_lshl_b32 s58, s51, 6")
            S("s_add_u32 s57, s57, s58")
            for q in range(4):
                S(f"buffer_load_dwordx2 v[{16+2*q}:{17+2*q}], v9, s[40:43], s57 offen offset:{q*16}")
            S.label(Ly)
            S.force_wait(vm=True)
        S.wait(rt)
        for q in range(4):
            for d in range(2):
                S(f"v_lshlrev_b32 v{AO+4*q+2*d}, 16, v{16+2*q+d}")
                S(f"v_and_b32 v{AO+4*q+2*d+1}, 0xffff0000, v{16+2*q+d}")
        mask_fn()
        expect()
        sb=8 if name=="P2" else 20
        poll(S,3,7,28,68,64,69,66)
        stamp(S,sb,48)
        S(f"s_mul_i32 s78, s55, {act_tile_bytes}")
        S(f"s_add_u32 s78, s78, s{s_act}")
        S(f"s_mul_i32 s57, s51, {khalf_bytes}")
        S("s_add_u32 s78, s78, s57")
        bt={}
        def ld(s):
            def f(S):
                if s%4==0 and s>0: S("s_add_u32 s78, s78, 4096")
                r=128+4*(s%32)
                bt[s]=S(f"buffer_load_dwordx4 v[{r}:{r+3}], v1, s[28:31], s78 offen offset:{(s%4)*1024} sc1{cfg.ntact}")
            return f
        PF2=cfg.PF2
        nxt2=[min(PF2,nsteps)]
        for s in range(min(PF2,nsteps)): ld(s)(S)
        S.barrier(bars[0])
        stamp(S,sb+1,48)
        steps=[]
        for s in range(nsteps):
            for t,(acc,vr) in enumerate(((AO,5),(AT,6))):
                c = accs(acc) if (t==0 or s>0) else '0'
                d=dict(acc=acc,c=c,b=128+4*(s%32),btok=(lambda s=s: bt[s]))
                off,pre,bar=items_fn(s,t)
                d['a']=('tr',vr,off); d['a2']=512
                if pre: d['pre_reads']=pre
                lim = s+cfg.PF2MAX
                if nxt2[0]<nsteps and nxt2[0]<=lim:
                    d['post']=ld(nxt2[0]); d['postcost']=1.5 if nxt2[0]%4==0 else 1; nxt2[0]+=1
                if t==1:
                    if bar: d['after']=(lambda S,bar=bar: pbar(S,bar))
                steps.append(d)
        if name=="P2": steps[cfg.bd2]['after']=(lambda S: S.barrier("Bd2"))
        mfma_stream(S,steps,[])
        stamp(S,sb+2,48)
        S("s_lshl_b32 s57, s20, 12")
        S(f"s_add_u32 s57, s57, {SCR}")
        S("v_add_u32 v8, s57, v1")
        S("s_xor_b32 s58, s57, 0x2000")
        S("v_add_u32 v9, s58, v1")
        for q in range(4): S(f"ds_write_b128 v8, v[{AT+4*q}:{AT+4*q+3}] offset:{q*1024}")
        S.wait(lg_all=True)
        S.barrier(bars[-1])
        stamp(S,sb+3,48)
        tk=[S(f"ds_read_b128 v[{96+4*q}:{99+4*q}], v9 offset:{q*1024}") for q in range(4)]
        for q in range(4):
            S.wait(tk[q])
            S(f"v_pk_add_f32 v[{AO+4*q}:{AO+4*q+1}], v[{AO+4*q}:{AO+4*q+1}], v[{96+4*q}:{97+4*q}]")
            S(f"v_pk_add_f32 v[{AO+4*q+2}:{AO+4*q+3}], v[{AO+4*q+2}:{AO+4*q+3}], v[{96+4*q+2}:{97+4*q+2}]")
        for i in range(8): S(f"v_cvt_pk_bf16_f32 v{16+i}, v{AO+2*i}, v{AO+2*i+1}")
        S(f"v_pk_mul_f32 v[96:97], v[{AO}:{AO+1}], v[{AO}:{AO+1}]")
        S(f"v_pk_add_f32 v[98:99], v[{AO}:{AO+1}], v[{AO+2}:{AO+3}]")
        S(f"v_pk_fma_f32 v[96:97], v[{AO+2}:{AO+3}], v[{AO+2}:{AO+3}], v[96:97]")
        for i in range(2,8):
            S(f"v_pk_add_f32 v[98:99], v[98:99], v[{AO+2*i}:{AO+2*i+1}]")
            S(f"v_pk_fma_f32 v[96:97], v[{AO+2*i}:{AO+2*i+1}], v[{AO+2*i}:{AO+2*i+1}], v[96:97]")
        for b in (16,20):
            S(f"v_permlane32_swap_b32 v{b}, v{b+2}")
            S(f"v_permlane32_swap_b32 v{b+1}, v{b+3}")
        S("v_add_f32 v98, v98, v99")
        S("v_add_f32 v96, v96, v97")
        S("v_permlane32_swap_b32 v98, v96")
        S("v_add_f32 v98, v98, v96")
        S("v_and_b32 v10, 31, v0")
        S("v_lshlrev_b32 v10, 4, v10")
        S("v_lshrrev_b32 v11, 5, v0")
        S("v_lshl_add_u32 v10, v11, 2, v10")
        S("s_lshl_b32 s58, s53, 9")
        S("s_lshl_b32 s59, s51, 3")
        S("s_add_u32 s81, s58, s59")
        return
    def out_tl(s_out,s_sout):
        S(f"s_add_u32 s57, s80, s{s_out}")
        st2("v[16:19]",1,57,0); st2("v[20:23]",1,57,1024)
        S("s_lshl_b32 s58, s55, 12")
        S("s_add_u32 s58, s58, s81")
        S(f"s_add_u32 s58, s58, s{s_sout}")
        st2("v98",10,58,0,'')

    def mask2():
        S("s_lshl_b32 s57, s52, 1")
        S("s_add_u32 s57, s57, s50")
        S("s_mov_b32 s58, 0x11111111")
        S("s_lshl_b32 s58, s58, s57")
        S("s_cmp_eq_u32 s51, 0")
        S("s_cselect_b32 s64, s58, 0")
        S("s_cselect_b32 s65, 0, s58")
    S("s_lshl_b32 s82, s51, 15")
    S("s_lshl_b32 s83, s51, 14")
    def items2(s,t):
        pre=None
        if s%8==0: pre = setaddr2(5+t,6+s//8,extra_s=82)
        return (s%8)*2048,pre,None
    gemm2("P2",16,72,TILE,16384,70,mask2,items2,["Bd","Be"],73,74,False)
    out_tl(73,74)
    stamp(S,12,48)
    bump(); set_flag()
    stamp(S,13,48)
    if cfg.stop_after==2:
        S("s_branch L_fin"); return S

    S("s_mov_b32 s58, 0x55555555")
    S("s_lshl_b32 s58, s58, s50")
    S("s_cmp_eq_u32 s51, 0")
    S("s_cselect_b32 s64, s58, 0")
    S("s_cselect_b32 s65, 0, s58")
    S("v_lshrrev_b32 v12, 5, v0"); S("v_mul_u32_u24 v12, 1536, v12")
    S("v_bfe_u32 v13, v0, 2, 2"); S("v_mul_u32_u24 v13, 192, v13"); S("v_add_u32 v12, v12, v13")
    S("v_bfe_u32 v13, v0, 4, 1"); S("v_lshl_add_u32 v12, v13, 5, v12")
    S("v_and_b32 v13, 3, v0"); S("v_lshl_add_u32 v12, v13, 3, v12")
    S("v_and_b32 v7, 31, v0")
    S("v_lshlrev_b32 v7, 4, v7")
    S("v_lshlrev_b32 v15, 3, v0")
    S(f"v_add_u32 v15, {CST}, v15")
    S("s_lshl_b32 s57, s22, 3")
    S("s_mul_hi_u32 s57, s57, 0x55555556")
    S("s_lshl_b32 s57, s57, 11")
    S(f"s_mul_i32 s84, s54, {HTILE}")
    S("s_add_u32 s84, s84, s57")
    S("s_add_u32 s84, s84, s75")
    expect()
    poll(S,3,14,28,68,64,69,66)
    stamp(S,14,48)
    S("s_lshl_b32 s78, s54, 15")
    S("s_add_u32 s78, s78, s73")
    S("s_lshl_b32 s79, s54, 12")
    S("s_add_u32 s79, s79, s74")
    NB3=24
    b3={}; st3={}
    def ld3(s):
        def f(S):
            if s%4==0 and s>0: S("s_add_u32 s78, s78, 4096")
            r=160+4*(s%NB3)
            b3[s]=S(f"buffer_load_dwordx4 v[{r}:{r+3}], v1, s[28:31], s78 offen offset:{(s%4)*1024} sc1{cfg.ntact}")
        return f
    def ldst3(u):
        def f(S): st3[u]=S(f"buffer_load_dwordx4 v[{224+4*u}:{227+4*u}], v7, s[28:31], s79 offen offset:{u*512} sc1")
        return f
    for s in range(3): ld3(s)(S)
    S.barrier("Bf")
    stamp(S,15,48)
    gA,gB,gI=8,9,10
    ACC=[64+16*t for t in range(6)]
    def setaddr3(vreg,i):
        def f(S):
            slot(57,i)
            S(f"v_add_u32 v{vreg}, s57, v12")
        return f
    lq3=[('s',u) for u in range(8)]+[('f',i) for i in range(3,32)]
    steps=[]; fill=[]
    jb=["J1","J2","J3","J4","J5","J6","J7"]
    for s in range(32):
        g=s//5; sl=s%5
        for t in range(6):
            m=t%2; p=t//2
            d=dict(acc=ACC[t],c=('0' if s==0 else accs(ACC[t])),a=('tr',5+m,sl*3072+p*64),a2=768,b=160+4*(s%NB3),btok=(lambda s=s: b3[s]))
            if sl==0 and t<2: d['pre_reads']=setaddr3(5+m,10+2*g+m)
            if lq3:
                k,i=lq3[0]
                ok = (k=='s') or (i<=s+cfg.P3AHEAD and (i-NB3)<s and not (i>=16 and s<5))
                if ok and (k=='s' or t%2==0):
                    lq3.pop(0)
                    d['post']=(ldst3(i) if k=='s' else ld3(i)); d['postcost']=1.5 if (k=='f' and i%4==0) else 1
                    if k=='f' and i==16: d['ld16']=True
            if t==5 and (sl==4 or s==31):
                d['after']=(lambda S,bar=jb[g]: pbar(S,bar))
            steps.append(d)
    assert not lq3
    fill.append((10,0,lambda S: S.wait(st3[7])))
    for c,t in stats_to_frag(S, list(range(224,256)), (11,13,14,16), 28, gelu=(gA,gB,gI)): fill.append((10,c,t))
    first16=[i for i,st in enumerate(steps) if st.get('post') is not None]
    i16=[i for i,st in enumerate(steps) if st.get('ld16')]
    cst={}
    def rdcs(key,reg,tile):
        cst[key]=S(f"ds_read_b64 v[{reg}:{reg+1}], v15 offset:{tile*512}")
    for i in i16: steps[i]['need_fill']=len(fill)
    mfma_stream(S,steps,fill)
    stamp(S,16,48)
    def gelu_quads(Sx, ag, au, quads, T, A_, B_, I_):
        def bc(r):
            return (f"v[{r&~1}:{(r&~1)+1}]", r&1)
        (At,As),(Bt,Bs),(It,Is)=bc(A_),bc(B_),bc(I_)
        for i0 in range(0,len(quads),2):
            qs=quads[i0:i0+2]
            def pk(fn):
                for j,q in enumerate(qs):
                    for i in (0,2): Sx(fn(T[j][i],4*q+i))
            def one(fn):
                for j,q in enumerate(qs):
                    for i in range(4): Sx(fn(T[j][i],4*q+i))
            P=lambda r: f"v[{r}:{r+1}]"
            pk(lambda t,k: f"v_pk_mul_f32 {P(t)}, {P(ag+k)}, {P(ag+k)}")
            pk(lambda t,k: f"v_pk_fma_f32 {P(t)}, {P(t)}, {Bt}, {At} op_sel:[0,{Bs},{As}] op_sel_hi:[1,{Bs},{As}]")
            pk(lambda t,k: f"v_pk_mul_f32 {P(t)}, {P(t)}, {P(ag+k)}")
            one(lambda t,k: f"v_exp_f32 v{t}, v{t}")
            pk(lambda t,k: f"v_pk_mul_f32 {P(au+k)}, {P(au+k)}, {P(ag+k)}")
            pk(lambda t,k: f"v_pk_fma_f32 {P(t)}, {P(t)}, {It}, {It} op_sel:[0,{Is},{Is}] op_sel_hi:[1,{Is},{Is}]")
            one(lambda t,k: f"v_rcp_f32 v{t}, v{t}")
            pk(lambda t,k: f"v_pk_mul_f32 {P(au+k)}, {P(au+k)}, {P(t)}")
    globals()['gelu_quads_fn']=gelu_quads
    T=[[16,17,18,19],[20,21,22,23]]
    order=(2,1,0) if cfg.episplit else (0,1,2)
    for p in order:
        rdcs(('g',p),32,3+2*p); rdcs(('u',p),36,4+2*p)
        S.wait(cst[('g',p)]); S(f"v_mfma_f32_32x32x16_bf16 {accs(ACC[2*p])}, v[32:35], v[28:31], {accs(ACC[2*p])}")
        S.wait(cst[('u',p)]); S(f"v_mfma_f32_32x32x16_bf16 {accs(ACC[2*p+1])}, v[36:39], v[28:31], {accs(ACC[2*p+1])}")
    if cfg.episplit:
        slot(57,22,extra_s=83)
        S("s_lshl_b32 s58, s50, 13"); S("s_add_u32 s57, s57, s58")
        S("v_add_u32 v24, s57, v1")
        S("s_lshl_b32 s57, s20, 12"); S(f"s_add_u32 s57, s57, {SCR}"); S("v_add_u32 v25, s57, v1")
        S("s_lshl_b32 s57, s20, 10"); S(f"s_add_u32 s57, s57, {SCR+16384}"); S("v_add_u32 v26, s57, v1")
        S("v_mov_b32 v11, 0")
        S("ds_write_b128 v26, v[8:11]")
        for q in range(4): S(f"ds_write_b128 v24, v[{ACC[4]+4*q}:{ACC[4]+4*q+3}] offset:{q*1024}")
        for q in range(4): S(f"ds_write_b128 v24, v[{ACC[5]+4*q}:{ACC[5]+4*q+3}] offset:{4096+q*1024}")
        for q in (2,3): S(f"ds_write_b128 v25, v[{ACC[2]+4*q}:{ACC[2]+4*q+3}] offset:{(q-2)*1024}")
        for q in (2,3): S(f"ds_write_b128 v25, v[{ACC[3]+4*q}:{ACC[3]+4*q+3}] offset:{2048+(q-2)*1024}")
        S.wait(lg_all=True)
        S.barrier("J8")
        work=[(1,[0,1]),(0,[0,1,2,3])]
    else:
        work=[(0,[0,1,2,3]),(1,[0,1,2,3]),(2,[0,1,2,3])]
    for p,quads in work:
        ag,au=ACC[2*p],ACC[2*p+1]
        gelu_quads(S,ag,au,quads,T,gA,gB,gI)
        for q in quads:
            for i in range(2): S(f"v_cvt_pk_bf16_f32 v{ag+2*q+i}, v{au+4*q+2*i}, v{au+4*q+2*i+1}")
        for b in [ag+4*(q//2) for q in quads if q%2==0]:
            S(f"v_permlane32_swap_b32 v{b}, v{b+2}")
            S(f"v_permlane32_swap_b32 v{b+1}, v{b+3}")
        S(f"s_add_u32 s57, s84, {p*2048}")
        for q in quads:
            if q%2==0: st2(f"v[{ag+2*q}:{ag+2*q+3}]",1,57,(q//2)*1024)
    if cfg.episplit:
        S.force_wait(vm=True)
        S.barrier("J9")
    stamp(S,18,48)
    bump(); set_flag()
    stamp(S,17,48)
    if cfg.stop_after==3:
        S("s_branch L_fin"); return S

    def mask4():
        S("s_lshl_b32 s57, s52, 1")
        S("s_add_u32 s57, s57, s50")
        S("s_mov_b32 s58, 0x11111111")
        S("s_lshl_b32 s58, s58, s57")
        S("s_lshl_b32 s59, 1, s57")
        S("s_cmp_eq_u32 s51, 0")
        S("s_cselect_b32 s64, s58, 0")
        S("s_cselect_b32 s65, s59, s58")
    S("s_mul_i32 s87, s51, 6144")
    kb=["K1","K2","K3","K4","K5"]
    def items4(s,t):
        g=s//8; sl=s%8
        pre=None
        if sl==0:
            if g<5: pre=setaddr2(5+t,24+2*g,extra_s=83)
            else: pre=setaddr2(5+t,34,add_s=87)
        bar = kb[g] if (sl==7 and g<5) else None
        return sl*2048,pre,bar
    gemm2("P4",43,75,HTILE,43*1024,73,mask4,items4,["Bh","K6"],None,None,True)
    Lfin=S.newlabel('Lfinal'); Ldone=S.newlabel('Lp4done')
    S("s_cmp_eq_u32 s48, 1")
    S(f"s_cbranch_scc1 {Lfin}")
    S(f"s_mov_b32 s76, {XB[2]}")
    S(f"s_mov_b32 s77, {STATS+2*SBUF}")
    out_tl(76,77)
    Lnh=S.newlabel('Lnohalo'); Lhd=S.newlabel('Lhalod')
    stamp(S,24,48)
    S("s_and_b32 s57, s52, s50")
    S("s_cmp_eq_u32 s57, 0")
    S(f"s_cbranch_scc1 {Lnh}")
    S("s_cmp_eq_u32 s21, 15")
    S(f"s_cbranch_scc1 {Lnh}")
    S("s_lshl_b32 s59, s53, 12")
    S("s_lshl_b32 s57, s51, 11")
    S("s_add_u32 s59, s59, s57")
    S(f"s_add_u32 s59, s59, {TEAMSZ+HALOX+32768}")
    S("buffer_store_dwordx4 v[16:19], v1, s[28:31], s59 offen sc1")
    S("buffer_store_dwordx4 v[20:23], v1, s[28:31], s59 offen offset:1024 sc1")
    S(f"s_add_u32 s59, s81, {TEAMSZ+HSTATS+4096}")
    S("buffer_store_dword v98, v10, s[28:31], s59 offen sc1")
    S.items.append(Ins("s_waitcnt vmcnt(3)"))
    S("s_add_u32 s57, s23, s49")
    S("s_add_u32 s57, s57, 1")
    S("v_mov_b32 v7, s57")
    S("s_mov_b64 exec, 1")
    S("buffer_store_dword v7, v4, s[32:35], 0 offen")
    S("buffer_store_dword v7, v4, s[36:39], 0 offen sc1")
    S.items.append(Ins("s_waitcnt vmcnt(2)"))
    S("s_lshl_b32 s57, s53, 3")
    S("s_lshl_b32 s58, s51, 2")
    S("s_add_u32 s57, s57, s58")
    S(f"s_add_u32 s57, s57, {TEAMSZ+HFLAGS+64}")
    S("v_mov_b32 v7, s57")
    S("s_add_u32 s57, s24, 1")
    S("v_mov_b32 v8, s57")
    S("buffer_store_dword v8, v7, s[28:31], 0 offen sc1")
    S("s_mov_b64 exec, -1")
    bump()
    S(f"s_branch {Lhd}")
    S.label(Lnh)
    bump(); set_flag()
    S.label(Lhd)
    stamp(S,25,48)
    if cfg.stop_after==4:
        S("s_branch L_fin"); return S
    S("s_mov_b32 s48, 1")
    S("s_branch L_layer")
    S.label(Lfin)
    S("s_nop 1")
    S("v_and_b32 v7, 31, v0")
    S("s_lshl_b32 s57, s98, 5")
    S("v_add_u32 v7, s57, v7")
    S("v_lshlrev_b32 v7, 10, v7")
    S("v_lshrrev_b32 v8, 5, v0")
    S("v_lshl_add_u32 v7, v8, 4, v7")
    S("s_lshl_b32 s57, s53, 7")
    S("s_lshl_b32 s58, s51, 6")
    S("s_add_u32 s57, s57, s58")
    S("buffer_store_dwordx4 v[16:19], v7, s[44:47], s57 offen")
    S("buffer_store_dwordx4 v[20:23], v7, s[44:47], s57 offen offset:32")
    S.force_wait(vm=True)
    stamp(S,26,48)
    S("s_or_b32 s57, s22, s20")
    S("s_cmp_lg_u32 s57, 0")
    S("s_cbranch_scc1 L_fin")
    S(f"v_mov_b32 v7, {EPOCH}")
    S("s_add_u32 s58, s23, 256")
    S("v_mov_b32 v8, s58")
    S("s_mov_b64 exec, 1")
    S("buffer_store_dword v8, v7, s[28:31], 0 offen")
    S("s_branch L_fin")
    return S

def gen_H():
    S=Stream('H')
    S.label("L_helper")
    S("s_nop 4")
    srd(S,32,6,7,512*1536*2)
    srd(S,36,8,9,512*512*2)
    srd(S,40,12,13,512*1376*2)
    srd(S,44,14,15,512*1376*2)
    srd(S,48,10,11,1376*512*2)
    S("s_sub_u32 s52, s20, 4")
    S("s_lshr_b32 s53, s22, 3")
    S("s_and_b32 s54, s22, 7")
    S("v_lshrrev_b32 v2, 2, v0")
    S("v_and_b32 v3, 3, v0")
    S("v_lshlrev_b32 v3, 4, v3")
    S("v_mul_u32_u24 v4, 3072, v2"); S("v_add_u32 v4, v4, v3")
    S("v_lshrrev_b32 v5, 3, v0"); S("v_lshlrev_b32 v5, 10, v5")
    S("v_bfe_u32 v8, v0, 4, 1"); S("v_lshlrev_b32 v8, 2, v8"); S("v_and_b32 v9, 7, v0"); S("v_xor_b32 v8, v8, v9")
    S("v_lshl_add_u32 v5, v8, 4, v5")
    S("s_lshl_b32 s55, s22, 6")
    S("s_lshl_b32 s56, s54, 7")
    S("s_lshl_b32 s57, s22, 3")
    S("s_mul_hi_u32 s57, s57, 0x55555556")
    S("s_lshl_b32 s57, s57, 6")
    S("s_mul_i32 s58, s52, 64*3072")
    S("s_mul_i32 s59, s52, 32*1024")
    S("s_mul_i32 s60, s52, 64*2752")
    S("s_lshl_b32 s61, s52, 12")
    S("v_add_u32 v3, s61, v1")
    if cfg.prof: S("s_mov_b32 s98, s92")
    hidx=[0]
    HN=[]
    def hs(name):
        if not (cfg.prof and cfg.prof_h): return
        hstamp(S,hidx[0]); HN.append(name); hidx[0]+=1
    S.hnames=HN
    itok={}
    win=[None]
    RREG={0:64,1:80,2:96,3:112,4:128,5:144,14:160,15:176,16:192,17:208}
    RREG.update({32:224,33:240})
    srd(S,84,16,17,2048*1024) if False else None
    def touch(soff_expr_lines, nkb, imm0=0, srdreg=28, vlane=1):
        if not cfg.pretouch: return
        for l in soff_expr_lines: S(l)
        for c in range(nkb):
            S(f"buffer_load_dword v8, v{vlane}, s[{srdreg}:{srdreg+3}], s62 offen offset:{(c%4)*1024}")
            if c%4==3 and c+1<nkb: S("s_add_u32 s62, s62, 4096")
    def warm_xcd(sr, nbytes, lo=0.0, hi=1.0):
        a=int(nbytes*lo)//1024; b=-(-int(nbytes*hi)//1024)
        per=-(-(b-a)//128)
        S("s_lshr_b32 s62, s2, 3"); S("s_lshl_b32 s62, s62, 2"); S("s_add_u32 s62, s62, s52")
        S(f"s_mul_i32 s62, s62, {per*1024}")
        S(f"s_add_u32 s62, s62, {a*1024}")
        for c in range(per):
            S(f"buffer_load_dword v8, v1, s[{sr}:{sr+3}], s62 offen offset:{(c%4)*1024}")
            if c%4==3 and c+1<per: S("s_add_u32 s62, s62, 4096")
    def warm_chip(sr, nbytes):
        kb=-(-nbytes//1024); per=-(-kb//1024)
        S("s_lshl_b32 s62, s2, 2"); S("s_add_u32 s62, s62, s52")
        S(f"s_mul_i32 s62, s62, {per*1024}")
        for c in range(per):
            S(f"buffer_load_dword v8, v1, s[{sr}:{sr+3}], s62 offen offset:{(c%4)*1024}")
    def touch_o_x1():
        touch(["s_lshl_b32 s62, s52, 15","s_lshl_b32 s63, s22, 11","s_add_u32 s62, s62, s63",f"s_add_u32 s62, s62, {OB[0]}"],2)
    def touch_xs(xb,sb):
        touch(["s_and_b32 s62, s52, 1","s_lshl_b32 s63, s53, 1","s_add_u32 s62, s62, s63","s_lshl_b32 s99, s62, 12","s_lshl_b32 s62, s62, 15",
               "s_lshl_b32 s63, s54, 12","s_add_u32 s62, s62, s63","s_lshr_b32 s63, s52, 1","s_lshl_b32 s63, s63, 11","s_add_u32 s62, s62, s63",
               f"s_add_u32 s62, s62, {xb}"],2)
        if cfg.pretouch:
            S("s_lshl_b32 s63, s54, 9"); S("s_add_u32 s62, s99, s63"); S(f"s_add_u32 s62, s62, {sb}")
            S("s_mov_b64 exec, 0xffffffff")
            S("buffer_load_dword v8, v1, s[28:31], s62 offen")
            S("s_mov_b64 exec, -1")
    def touch_out():
        if not cfg.pretouch: return
        S("s_add_u32 s84, s16, 0"); S("s_addc_u32 s85, s17, 0"); S(f"s_mov_b32 s86, {2048*1024}"); S("s_mov_b32 s87, 0x00020000")
        S("s_lshl_b32 s62, s21, 2"); S("s_lshl_b32 s63, s53, 1"); S("s_add_u32 s62, s62, s63"); S("s_and_b32 s63, s52, 1"); S("s_add_u32 s62, s62, s63")
        S("s_lshl_b32 s62, s62, 15")
        S("s_lshl_b32 s63, s54, 7"); S("s_add_u32 s62, s62, s63"); S("s_lshr_b32 s63, s52, 1"); S("s_lshl_b32 s63, s63, 6"); S("s_add_u32 s62, s62, s63")
        S("v_and_b32 v9, 31, v0"); S("v_lshlrev_b32 v9, 10, v9")
        S("buffer_load_dword v8, v9, s[84:87], s62 offen")
    def touch_h():
        touch([f"s_mul_i32 s62, s52, {HTILE}","s_lshl_b32 s63, s57, 5","s_add_u32 s62, s62, s63",f"s_add_u32 s62, s62, {HB[0]}"],6)
    def throttle():
        if win[0] is not None and S.vm_issued-S.vm_done>win[0]:
            S.wait(('vm',S.vm_issued-win[0]))
    def spec_of(i):
        if i<6:
            nm=['k','v','k','v','q','q'][i]; half=[0,0,1,1,0,1][i]
            col={'q':0,'k':1024,'v':2048}[nm]
            return (32,4,3072,55,col,256*half,58)
        elif i<10:
            return (36,5,512,56,0,256*(i-6),59)
        return None
    W3V=[6,10,18]
    def w3chunks(i):
        g=(i-10)//2; m=(i-10)%2
        rows=80 if g<6 else 32
        return g,m,rows,rows*12//64
    def w3_c(k,nch):
        S(f"s_add_u32 s62, s52, {4*k}")
        if 4*k+3>=nch:
            S("s_sub_u32 s63, s62, 3"); S(f"s_cmp_ge_u32 s62, {nch}"); S("s_cselect_b32 s62, s63, s62")
    def w3_issue(i, emit):
        g,m,rows,nch=w3chunks(i)
        sr=40 if m==0 else 44
        for k in range(4):
            if 4*k>=nch: break
            w3_c(k,nch)
            S("s_mul_i32 s63, s62, 0x5556"); S("s_lshr_b32 s63, s63, 16")
            S(f"s_mul_i32 s63, s63, {16*2752}")
            S("s_add_u32 s63, s63, s57")
            S(f"s_add_u32 s63, s63, {80*g*2752}")
            emit(k, sr, W3V[k%3])
    def rload(i):
        r=RREG[i]
        if 10<=i<24:
            tk=[None]
            def em(k,sr,vl):
                tk[0]=S(f"buffer_load_dwordx4 v[{r+4*k}:{r+4*k+3}], v{vl}, s[{sr}:{sr+3}], s63 offen{cfg.nt}")
            w3_issue(i,em)
            itok[('r',i)]=tk[0]
            return
        if i<10:
            sr,vl,pitch,scol,colimm,row0,swave=spec_of(i)
            S(f"s_add_u32 s62, s{scol}, s{swave}")
            S(f"s_add_u32 s62, s62, {colimm+row0*pitch}")
        else:
            g=(i-24)//2; kh=(i-24)%2; row0=688*kh+128*g
            sr,vl,pitch=48,5,512
            S("s_add_u32 s62, s56, s59")
            S(f"s_add_u32 s62, s62, {row0*1024}")
        tok=None
        for c in range(4):
            if c>0: S(f"s_add_u32 s62, s62, {16*pitch}")
            tok=S(f"buffer_load_dwordx4 v[{r+4*c}:{r+4*c+3}], v{vl}, s[{sr}:{sr+3}], s62 offen{cfg.nt}"); throttle()
        itok[('r',i)]=tok
    def rput(n):
        L,i=divmod(n,NITEMS)
        base=(n*SLOT)&0x1ffff
        r=RREG[i]
        S.wait(itok[('r',i)])
        tok=None
        if 10<=i<24:
            g,m,rows,nch=w3chunks(i)
            for k in range(4):
                if 4*k>=nch: break
                w3_c(k,nch)
                S("s_lshl_b32 s62, s62, 10"); S(f"s_add_u32 s62, s62, {base}")
                S("v_add_u32 v2, s62, v1")
                if S.lg_issued-S.lg_done>=14: S.wait(('lg',S.lg_issued-8))
                tok=S(f"ds_write_b128 v2, v[{r+4*k}:{r+4*k+3}]")
            itok[n]=tok
            return
        S(f"v_add_u32 v2, {base}, v3")
        for c in range(4):
            if S.lg_issued-S.lg_done>=14: S.wait(('lg',S.lg_issued-8))
            tok=S(f"ds_write_b128 v2, v[{r+4*c}:{r+4*c+3}] offset:{c*1024}")
        itok[n]=tok
    def dma(n):
        L,i=divmod(n,NITEMS)
        if i in RREG:
            if L==0 and ('r',i) not in itok: rload(i)
            rput(n); return
        base=(n*SLOT)&0x1ffff
        tok=None
        if 10<=i<24:
            tk=[None]
            def em(k,sr,vl):
                S("s_lshl_b32 s62, s62, 10"); S(f"s_add_u32 m0, s62, {base}")
                S("s_nop 0")
                tk[0]=S(f"buffer_load_dwordx4 v{vl}, s[{sr}:{sr+3}], s63 offen lds"); throttle()
            w3_issue(i,em)
            itok[n]=tk[0]
            return
        spec=spec_of(i)
        if spec:
            sr,vl,pitch,scol,colimm,row0,swave=spec
            S(f"s_add_u32 s62, s{scol}, s{swave}")
            S(f"s_add_u32 s62, s62, {colimm+row0*pitch}")
            S(f"s_add_u32 m0, s61, {base}")
            for c in range(4):
                if c>0:
                    S(f"s_add_u32 s62, s62, {16*pitch}")
                    S(f"s_add_u32 m0, m0, 1024")
                tok=S(f"buffer_load_dwordx4 v{vl}, s[{sr}:{sr+3}], s62 offen{cfg.ntw3 if 10<=i<22 else ''} lds"); throttle()
        elif i<34:
            g=(i-24)//2; kh=(i-24)%2
            row0=688*kh+128*g
            S("s_add_u32 s62, s56, s59")
            S(f"s_add_u32 s62, s62, {row0*1024}")
            S(f"s_add_u32 m0, s61, {base}")
            for c in range(4):
                if c>0:
                    S(f"s_add_u32 s62, s62, {8*1024}")
                    S(f"s_add_u32 m0, m0, 1024")
                tok=S(f"buffer_load_dwordx4 v5, s[48:51], s62 offen lds"); throttle()
        else:
            S("s_lshr_b32 s63, s52, 1"); S(f"s_mul_i32 s63, s63, {688*1024}")
            S("s_and_b32 s62, s52, 1"); S(f"s_mul_i32 s62, s62, {24*1024}")
            S("s_add_u32 s62, s62, s63")
            S("s_add_u32 s62, s62, s56")
            S(f"s_add_u32 s62, s62, {640*1024}")
            S("s_mul_i32 s63, s52, 3072")
            S(f"s_add_u32 m0, s63, {base}")
            for c in range(3):
                if c>0:
                    S(f"s_add_u32 s62, s62, {8*1024}")
                    S(f"s_add_u32 m0, m0, 1024")
                tok=S(f"buffer_load_dwordx4 v5, s[48:51], s62 offen lds"); throttle()
        itok[n]=tok
    nlayers = 2 if cfg.stop_after>4 else 1
    last_item = NITEMS*nlayers-1
    done=set()
    def issue(*ns):
        for n in ns:
            if n<=last_item and n not in done:
                dma(n); done.add(n)
    S("v_lshrrev_b32 v7, 4, v0"); S("v_lshlrev_b32 v7, 9, v7")
    S("v_bfe_u32 v8, v0, 2, 2"); S("v_lshl_add_u32 v7, v8, 6, v7")
    S("v_and_b32 v8, 3, v0"); S("v_lshl_add_u32 v7, v8, 3, v7")
    S("s_and_b32 s64, s52, 1")
    S("s_lshl_b32 s65, s64, 5")
    S("v_add_u32 v7, s65, v7")
    for r in range(12,16): S(f"v_mov_b32 v{r}, 0x3f803f80")
    S("v_mov_b32 v8, 0"); S("v_mov_b32 v9, 0"); S(f"v_mov_b32 v10, {ZERO8}")
    if S.lg_issued-S.lg_done>=14: S.wait(lg_all=True)
    S("ds_write_b64 v10, v[8:9]")
    S("v_lshrrev_b32 v11, 4, v0"); S("v_lshlrev_b32 v11, 9, v11")
    S("v_and_b32 v8, 15, v0"); S("v_lshl_add_u32 v11, v8, 4, v11"); S("v_add_u32 v11, 256, v11")
    S("v_and_b32 v16, 15, v0"); S("v_lshlrev_b32 v16, 4, v16"); S("v_add_u32 v16, 256, v16")
    S("s_lshr_b32 s66, s52, 1")
    S("s_lshl_b32 s67, s66, 9")
    S("s_lshl_b32 s68, s64, 7")
    S("s_add_u32 s67, s67, s68")
    S(f"s_add_u32 s67, s67, {CST}")
    S("v_and_b32 v17, 15, v0"); S("v_lshlrev_b32 v17, 3, v17")
    S("v_bfe_u32 v8, v0, 4, 1"); S("v_lshl_add_u32 v17, v8, 8, v17")
    S("v_add_u32 v17, s67, v17")
    S(f"v_mov_b32 v8, {ZERO8}")
    S("v_cmp_gt_u32 vcc, 32, v0")
    S("v_cndmask_b32 v17, v8, v17, vcc")
    for r in (22,23,26,27): S(f"v_mov_b32 v{r}, 0")
    S("v_and_b32 v18, 15, v0"); S("v_lshlrev_b32 v18, 4, v18")
    S("v_bfe_u32 v8, v0, 4, 1")
    S("v_lshrrev_b32 v9, 5, v0")
    S("v_mul_u32_u24 v19, 2304, v8"); S("v_add_u32 v19, v19, v18"); S("v_lshl_add_u32 v19, v9, 3, v19")
    S("s_mul_i32 s68, s64, 4608"); S(f"s_add_u32 s68, s68, {KBUF}")
    S("v_add_u32 v19, s68, v19")
    S("v_mul_u32_u24 v28, 4608, v8"); S("v_add_u32 v28, v28, v18")
    S("v_mul_u32_u24 v9, 2304, v9"); S("v_add_u32 v28, v28, v9")
    S("s_mul_i32 s68, s64, 9216"); S(f"s_add_u32 s68, s68, {VBUF}")
    S("v_add_u32 v28, s68, v28")
    S.force_wait(lg=True)
    for j,vr in ((0,6),(1,10),(2,18)):
        S(f"s_add_u32 s62, s52, {j}")
        S("s_sub_u32 s63, s62, 3"); S("s_cmp_ge_u32 s62, 3"); S("s_cselect_b32 s62, s63, s62")
        S("s_lshl_b32 s62, s62, 6")
        S("v_add_u32 v8, s62, v0")
        S("v_mul_u32_u24 v9, 0x5556, v8"); S("v_lshrrev_b32 v9, 18, v9")
        S("v_mul_u32_u24 v30, 12, v9"); S("v_sub_u32 v8, v8, v30")
        S(f"v_mul_u32_u24 v{vr}, 2752, v9"); S(f"v_lshl_add_u32 v{vr}, v8, 4, v{vr}")

    if cfg.earlywarm:
        warm_chip(32,512*1536*2)
        if cfg.earlytouch: touch_h(); touch_o_x1()
    if cfg.tlbwarm:
        S("v_mov_b32 v2, 0")
        S("s_mov_b64 exec, 1")
        for sr in (40,44,48):
            S(f"buffer_load_dword v36, v2, s[{sr}:{sr+3}], 0 offen")
        S("s_mov_b64 exec, -1")
    S.barrier("S0")
    win[0]=cfg.win0
    def chip_others():
        for sr,nb in ((36,512*512*2),(40,512*1376*2),(44,512*1376*2),(48,1376*512*2)): warm_chip(sr,nb)
    def narrow():
        for i in (0,1): rload(i)
        issue(0,1)
        for i in (2,3): rload(i)
        issue(2,3)
        for i in (4,5): rload(i)
        issue(4,5)
    so=cfg.startord
    if so=='A':
        warm_xcd(32,512*1536*2,0.0,0.5); warm_xcd(32,512*1536*2,0.5,1.0); narrow(); chip_others()
    elif so=='B':
        narrow(); touch_o_x1(); chip_others()
    elif so=='C':
        if not cfg.earlywarm: warm_chip(32,512*1536*2)
        narrow(); touch_o_x1(); chip_others()
    elif so=='F':
        win[0]=None
        for i in range(6): rload(i)
        issue(0,1)
    elif so=='D':
        for i in range(6): rload(i)
        chip_others()
        issue(0,1,2,3,4,5)
    elif so=='E':
        warm_xcd(32,512*1536*2,0.0,0.5)
        for i in (0,1): rload(i)
        warm_xcd(32,512*1536*2,0.5,1.0)
        for i in (2,3,4,5): rload(i)
        chip_others()
        issue(0,1,2,3,4,5)
    if cfg.stop_after==0:
        S.force_wait(vm=True); S("s_branch L_fin"); return S
    def cs_finish(dreg):
        S(f"v_cvt_pk_bf16_f32 v30, v{dreg}, v{dreg}")
        S(f"v_lshlrev_b32 v30, 16, v30")
        S(f"v_sub_f32 v31, v{dreg}, v30")
        S(f"v_cvt_pk_bf16_f32 v32, v{dreg}, v31")
        S(f"v_and_b32 v30, 0xffff0000, v32")
        S(f"v_sub_f32 v31, v31, v30")
        S(f"v_cvt_pk_bf16_f32 v33, v31, 0")
        S("v_and_b32 v30, 15, v0"); S("v_lshlrev_b32 v30, 3, v30")
        S("v_add_u32 v30, s70, v30")
        S("s_mov_b64 exec, 0xffff")
        S("ds_write_b64 v30, v[32:33]")
        S("s_mov_b64 exec, -1")
    def tr16(dst, vaddr, off):
        S(f"ds_read_b64_tr_b16 v[{dst}:{dst+1}], v{vaddr} offset:{off}")
        return S(f"ds_read_b64_tr_b16 v[{dst+2}:{dst+3}], v{vaddr} offset:{off+256}")
    def cs_item(nA,nB,tileA,halfA,tileB,halfB):
        bA=(nA*SLOT)&0x1ffff; bB=(nB*SLOT)&0x1ffff
        S.wait(lg_all=True)
        S("s_cmp_lt_u32 s52, 2")
        csel(S,69,bA,bB)
        csel(S,70,CST+tileA*512+halfA*256,CST+tileB*512+halfB*256)
        S("s_lshl_b32 s71, s64, 7")
        S("s_add_u32 s70, s70, s71")
        S("v_add_u32 v29, s69, v7")
        tk=[]
        for sp in range(4): tk.append(tr16(36+4*sp,29,sp*2048))
        for sp in range(8):
            S.wait(tk[sp])
            r=36+4*(sp%4)
            S(f"v_mfma_f32_16x16x32_bf16 v[52:55], v[12:15], v[{r}:{r+3}], {'0' if sp==0 else 'v[52:55]'}")
            if sp+4<8: tk.append(tr16(r,29,(sp+4)*2048))
        cs_finish(52)

    for L in range(nlayers):
        n0=NITEMS*L
        def pub(*items):
            toks=[itok[n0+i] for i in items if (n0+i) in itok]
            S.wait(*toks)
        def bar(name, publish=(), items=None, lg=True, w=None, pre=None):
            pub(*publish)
            if lg: S.wait(lg_all=True)
            hs(f"L{L} {name} arrive")
            S.barrier(name)
            hs(f"L{L} {name} pass")
            if pre: pre()
            if items is not None:
                win[0]=(None if w=='none' else (w if w is not None else cfg.win))
                issue(*[n0+i for i in items])
                hs(f"L{L} {name} issued")
        AF = 160 if L==0 else 64
        BT = 224 if L==0 else 128
        ST = AF
        if L==0:
            S(f"s_mov_b32 s76, {HALOX}")
            S(f"s_mov_b32 s77, {HSTATS}")
        else:
            S("s_cmp_eq_u32 s21, 0")
            csel(S,76,HALOX,HALOX+32768)
            csel(S,77,HSTATS,HSTATS+4096)
        bar("Ba",publish=(0,1),lg=True)
        if L==0 and cfg.startord=='F':
            pass
        lo0=((n0+0)*SLOT)&0x1ffff; lo1=((n0+1)*SLOT)&0x1ffff; hi0=((n0+2)*SLOT)&0x1ffff; hi1=((n0+3)*SLOT)&0x1ffff
        S("s_cmp_lt_u32 s52, 2")
        csel(S,69,lo0,lo1)
        csel(S,71,hi0,hi1)
        S("v_add_u32 v29, s69, v7")
        S("v_add_u32 v35, s71, v7")
        def spoll(maxit, Lok, sleep):
            Lp=S.newlabel('Lhp')
            S("s_mov_b32 s79, 0")
            S.label(Lp)
            S.smem("s_load_dwordx16 s[80:95], s[72:73], 0 glc")
            S("s_add_u32 s79, s79, 1")
            S.force_wait(lg=True)
            scheck(Lok)
            if sleep: S(f"s_sleep {sleep}")
            S(f"s_cmp_lt_u32 s79, {maxit}")
            S(f"s_cbranch_scc1 {Lp}")
        def scheck(Lok):
            for i in range(16): S(f"s_xor_b32 s{80+i}, s{80+i}, s75")
            for st_ in (8,4,2,1):
                for i in range(st_): S(f"s_or_b32 s{80+i}, s{80+i}, s{80+i+st_}")
            S("s_cmp_eq_u32 s80, 0")
            S(f"s_cbranch_scc1 {Lok}")
        def swarm():
            if not cfg.halowarm: return
            S("s_lshl_b32 s79, s22, 2"); S("s_add_u32 s79, s79, s52")
            S("s_lshl_b32 s79, s79, 9"); S("s_add_u32 s79, s79, s76"); S("s_add_u32 s79, s79, 256")
            S("s_add_u32 s82, s18, s79"); S("s_addc_u32 s83, s19, 0")
            for c in range(4): S.smem(f"s_load_dword s84, s[82:83], {c*64} ")
            S("s_lshl_b32 s79, s22, 1"); S("s_and_b32 s74, s52, 1"); S("s_add_u32 s79, s79, s74")
            S("s_lshr_b32 s74, s79, 2"); S("s_lshl_b32 s74, s74, 9"); S("s_and_b32 s79, s79, 3"); S("s_lshl_b32 s79, s79, 6")
            S("s_add_u32 s79, s79, s74"); S("s_add_u32 s79, s79, s77"); S("s_add_u32 s79, s79, 256")
            S("s_add_u32 s86, s18, s79"); S("s_addc_u32 s87, s19, 0")
            S.smem("s_load_dword s85, s[86:87], 0")
        S("s_add_u32 s75, s23, 1")
        S(f"s_mov_b32 s74, {PF0 if L==0 else HFLAGS+64}")
        S("s_add_u32 s72, s18, s74")
        S("s_addc_u32 s73, s19, 0")
        for sp in range(7): tr16(AF+4*sp,29,sp*2048)
        S.wait(lg_all=True)
        tr16(AF+4*7,29,7*2048)
        S.wait(lg_all=True)
        if L==0:
            for q in range(8):
                S(f"v_mfma_f32_16x16x32_bf16 v[52:55], v[12:15], v[{AF+4*q}:{AF+4*q+3}], {'0' if q==0 else 'v[52:55]'}")
        hs(f"L{L} lo preread")
        if L==0 and cfg.startord=='F': issue(2,3,4,5)
        bar("Ba2",publish=(2,3,4,5),lg=True)
        for sp in range(8,15): tr16(AF+4*sp,35,(sp%8)*2048)
        S.wait(lg_all=True)
        tr16(AF+4*15,35,7*2048)
        S.wait(lg_all=True)
        if L==0:
            for q in range(8,16):
                S(f"v_mfma_f32_16x16x32_bf16 v[60:63], v[12:15], v[{AF+4*q}:{AF+4*q+3}], {'0' if q==8 else 'v[60:63]'}")
            S("s_lshl_b32 s70, s66, 9"); S("s_lshl_b32 s71, s64, 7"); S("s_add_u32 s70, s70, s71"); S(f"s_add_u32 s70, s70, {CST}")
            cs_finish(52)
            S("s_add_u32 s70, s70, 256")
            cs_finish(60)
            cs_item(n0+4,n0+5,2,0,2,1)
            S.wait(lg_all=True)
        hs(f"L{L} A preread")
        if L==0 and cfg.startord=='F':
            touch_o_x1()
            if not cfg.cwarm2: chip_others()
        if cfg.chalo:
            if cfg.halowarm: swarm()
            bar("Bb",lg=False)
            S.force_wait(lg=True)
        else:
            S.smem("s_load_dwordx16 s[80:95], s[72:73], 0 glc")
            bar("Bb",lg=False)
            LokB=S.newlabel('LhokB')
            S.force_wait(lg=True)
            if L==1:
                S("s_cmp_eq_u32 s21, 0")
                S(f"s_cbranch_scc1 {LokB}")
            scheck(LokB)
            spoll(cfg.timeout,LokB,cfg.hsleep)
            S.label(LokB)
            S("s_nop 1")
        hs(f"L{L} halo flag")
        ht={}
        def hload(sp):
            if sp%2==0 and sp>0: S("s_add_u32 s76, s76, 4096")
            r=BT+4*(sp%8)
            ht[sp]=S(f"buffer_load_dwordx4 v[{r}:{r+3}], v11, s[28:31], s76 offen offset:{(sp%2)*2048} sc1")
        def ldstats():
            t=None
            for u in range(8):
                t=S(f"buffer_load_dwordx4 v[{ST+4*u}:{ST+3+4*u}], v16, s[28:31], s77 offen offset:{u*512} sc1")
            return t
        def dostats(t):
            S.wait(t)
            for c,tt_ in stats_to_frag(S, list(range(ST,ST+32)), (30,31,32,33), 20, out_rstd=34): S(tt_)
        for sp in range(8): hload(sp)
        for sp in range(16):
            S.wait(ht[sp])
            hb_=BT+4*(sp%8)
            S(f"v_mfma_f32_16x16x32_bf16 v[56:59], v[{AF+4*sp}:{AF+4*sp+3}], v[{hb_}:{hb_+3}], {'0' if sp==0 else 'v[56:59]'}")
            if sp+8<16: hload(sp+8)
            if sp==7:
                stt=ldstats()
        hs(f"L{L} halo mfma done")
        dostats(stt)
        ct=S("ds_read_b64 v[24:25], v17")
        S.wait(ct)
        S("v_mfma_f32_16x16x32_bf16 v[56:59], v[24:27], v[20:23], v[56:59]")
        for i in range(4): S(f"v_mul_f32 v{56+i}, v{56+i}, v34")
        Lv=S.newlabel('Lhv'); Ld=S.newlabel('Lhd')
        HALO_FIN=True
        S("s_cmp_ge_u32 s52, 2")
        S(f"s_cbranch_scc1 {Lv}")
        S("v_cvt_pk_bf16_f32 v30, v56, v57")
        S("v_cvt_pk_bf16_f32 v31, v58, v59")
        S("ds_write_b64 v19, v[30:31]")
        S(f"s_branch {Ld}")
        S.label(Lv)
        S("ds_write_b128 v28, v[56:59]")
        S.label(Ld)
        S.force_wait(lg=True)
        hs(f"L{L} halo written")
        def ld_r(*items):
            def f():
                win[0]=None
                if L==0:
                    for i in items: rload(i)
            return f
        bar("Bc",items=(6,7,8,9,10,11),w='none',pre=(touch_o_x1 if (L==1 and cfg.touchL1o) else None))
        if cfg.stop_after==1+4*L:
            S.force_wait(vm=True); S("s_branch L_fin"); return S
        bar("Bd",publish=(6,7,8,9))
        bar("Bd2",items=(12,13),w='none')
        ld_r(14,15,16,17)()
        bar("Be",items=((14,15,16,17) if L==1 else ()))
        if cfg.stop_after==2+4*L:
            S.force_wait(vm=True); S("s_branch L_fin"); return S
        def cs3(g):
            if L!=0: return
            rows=80 if g<6 else 32
            bA=((n0+10+2*g)*SLOT)&0x1ffff; bB=((n0+11+2*g)*SLOT)&0x1ffff
            S.wait(lg_all=True)
            S("s_cmp_lt_u32 s52, 2")
            csel(S,69,bA,bB)
            S("v_lshrrev_b32 v35, 2, v0"); S("v_mul_u32_u24 v29, 192, v35")
            S("v_and_b32 v35, 3, v0"); S("v_lshl_add_u32 v29, v35, 3, v29")
            S("s_add_u32 s69, s69, s65")
            S("v_add_u32 v29, s69, v29")
            ops=[(sl,p) for sl in range(rows//16) for p in range(3)]
            tk=[]
            def rd(j):
                sl,p=ops[j]; r=36+2*(j%8)
                return S(f"ds_read_b64_tr_b16 v[{r}:{r+1}], v29 offset:{sl*3072+p*64}")
            for j in range(min(8,len(ops))): tk.append(rd(j))
            for j,(sl,p) in enumerate(ops):
                S.wait(tk[j]); r=36+2*(j%8); a=52+4*p
                first=(g==0 and sl==0)
                S(f"v_mfma_f32_16x16x16_bf16 v[{a}:{a+3}], v[12:13], v[{r}:{r+1}], {'0' if first else 'v[%d:%d]'%(a,a+3)}")
                if j+8<len(ops): tk.append(rd(j+8))
        def cs3_fin():
            if L!=0: return
            for p in range(3):
                S("s_lshr_b32 s70, s52, 1"); S(f"s_add_u32 s70, s70, {3+2*p}"); S("s_lshl_b32 s70, s70, 9")
                S("s_lshl_b32 s71, s64, 7"); S("s_add_u32 s70, s70, s71"); S(f"s_add_u32 s70, s70, {CST}")
                cs_finish(52+4*p)
                S("v_mov_b32 v32, 0"); S("v_mov_b32 v33, 0")
                S("v_add_u32 v30, 256, v30")
                S("s_mov_b64 exec, 0xffff"); S("ds_write_b64 v30, v[32:33]"); S("s_mov_b64 exec, -1")
                S.wait(lg_all=True)
        bar("Bf",publish=(10,11,12,13))
        cs3(0); cs3(1)
        if L==0: issue(n0+14,n0+15)
        bar("J1",publish=(14,15),items=(18,19),w='none')
        cs3(2)
        if L==0: issue(n0+16,n0+17)
        bar("J2",publish=(16,17),items=(20,21),w='none')
        cs3(3)
        bar("J3",publish=(18,19),items=(22,23),w='none')
        cs3(4)
        bar("J4",publish=(20,21),items=(24,25),w='none')
        ld_r(32,33)()
        cs3(5)
        bar("J5",publish=(22,23),items=(26,27),w='none',pre=(touch_h if (L==0 or cfg.touchL1) else None))
        if cfg.warmP3 and L==0: warm_xcd(36,512*512*2)
        cs3(6); cs3_fin()
        bar("J6",items=(28,29),w='none')
        if cfg.episplit:
            bar("J7")
            S(f"v_mov_b32 v30, {MISC+32}")
            tm=S("ds_read_b32 v31, v30"); S.wait(tm)
            S("v_readfirstlane_b32 s82, v31")
            S("s_mov_b32 s84, s18"); S("s_mov_b32 s85, s19"); S("s_mov_b32 s86, s82"); S("s_mov_b32 s87, 0x00020000")
            S("s_mov_b32 s88, s18"); S("s_mov_b32 s89, s19"); S(f"s_sub_u32 s90, {WS_USED}, s82"); S("s_mov_b32 s91, 0x00020000")
            S(f"s_mul_i32 s92, s52, {HTILE}"); S("s_lshl_b32 s93, s57, 5"); S("s_add_u32 s92, s92, s93"); S(f"s_add_u32 s92, s92, {HB[0]}")
            b22=((n0+22)*SLOT)&0x1ffff; b23=((n0+23)*SLOT)&0x1ffff
            S("s_cmp_lt_u32 s52, 2"); csel(S,93,b22,b23)
            S("s_and_b32 s94, s52, 1"); S("s_lshl_b32 s94, s94, 13"); S("s_add_u32 s93, s93, s94")
            S("v_add_u32 v29, s93, v1")
            S("s_lshl_b32 s93, s52, 12"); S(f"s_add_u32 s93, s93, {SCR}"); S("v_add_u32 v35, s93, v1")
            S("s_lshl_b32 s93, s52, 10"); S(f"s_add_u32 s93, s93, {SCR+16384}"); S("v_add_u32 v30, s93, v1")
            bar("J8",lg=False)
            CN=36; ag=40; au=48; T2=[[56,57,58,59],[60,61,62,63]]
            t0=S(f"ds_read_b128 v[{CN}:{CN+3}], v30")
            A_,B_,I_=CN,CN+1,CN+2
            def st2h(data,soff,imm):
                S(f"buffer_store_dwordx4 {data}, v1, s[84:87], s{soff} offen offset:{imm}")
                return S(f"buffer_store_dwordx4 {data}, v1, s[88:91], s{soff} offen offset:{imm} sc1")
            last=None
            for (va,go,uo,p,oi) in ((29,0,4096,2,0),(29,2048,4096+2048,2,1024),(35,0,2048,1,1024)):
                for q in range(2): S(f"ds_read_b128 v[{ag+4*q}:{ag+4*q+3}], v{va} offset:{go+q*1024}")
                for q in range(2): S(f"ds_read_b128 v[{au+4*q}:{au+4*q+3}], v{va} offset:{uo+q*1024}")
                S.wait(lg_all=True)
                gelu_quads_fn(S,ag,au,[0,1],T2,A_,B_,I_)
                for i in range(4): S(f"v_cvt_pk_bf16_f32 v{ag+i}, v{au+2*i}, v{au+2*i+1}")
                S(f"v_permlane32_swap_b32 v{ag}, v{ag+2}"); S(f"v_permlane32_swap_b32 v{ag+1}, v{ag+3}")
                S(f"s_add_u32 s93, s92, {p*2048}")
                last=st2h(f"v[{ag}:{ag+3}]",93,oi)
            S.wait(last)
            bar("J9",items=(30,31),w='none',lg=False)
        else:
            bar("J7",items=(30,31),w='none')
        if cfg.stop_after==3+4*L:
            S.force_wait(vm=True); S("s_branch L_fin"); return S
        bar("Bh",publish=(24,25,26,27))
        bar("K1",publish=(28,29),items=(32,33))
        bar("K2",publish=(30,31),items=(34,35))
        bar("K3",publish=(32,33),items=(36,37),pre=None if L==0 else touch_out)
        bar("K4",publish=(34,),items=(38,39))
        bar("K5",items=(40,41))
        bar("K6",items=(42,))
        if cfg.stop_after==4+4*L:
            S.force_wait(vm=True); S("s_branch L_fin"); return S
    S("s_branch L_fin")
    return S

def build():
    P=gen_prologue(); C=gen_C(); H=gen_H()
    global HNAMES
    HNAMES=getattr(H,'hnames',[])
    nl = 2 if cfg.stop_after>4 else 1
    cb=C.barriers; hb=H.barriers
    while cb and cb[0] in ("S0","S00"):
        assert cb[0]==hb[0]
        cb=cb[1:]; hb=hb[1:]
    if cfg.stop_after>=4:
        exp=cb*nl
        if cfg.stop_after in (5,6,7):
            pass
        else:
            assert hb==exp, (hb,exp)
    else:
        assert hb==cb, (hb,cb)
    hdr=open(os.path.join(os.path.dirname(os.path.abspath(__file__)),'header.txt')).read().rstrip('\n')
    txt=hdr+f"\n; @launch grid=(256,1,1) block=(512,1,1) lds={LDS_BYTES}\n"
    txt+='.amdgcn_target "amdgcn-amd-amdhsa--gfx950"\n.text\n'
    txt+=f".globl {KNAME}\n.p2align 8\n.type {KNAME},@function\n{KNAME}:\n"
    txt+=P.render()+"\n"+C.render()+"\n"+H.render()+"\n"
    txt+="L_fin:\n    s_waitcnt vmcnt(0) lgkmcnt(0)\nL_end:\n    s_endpgm\nL_codeend:\n"
    txt+=".set CODE_LAST, (L_codeend - L_pc - 16) & 0xfffffff0\n" if cfg.codepf else ""
    txt+=f""".section .rodata,"a"
.p2align 6
.amdhsa_kernel {KNAME}
  .amdhsa_next_free_vgpr 256
  .amdhsa_next_free_sgpr 100
  .amdhsa_accum_offset 256
  .amdhsa_group_segment_fixed_size 0
  .amdhsa_kernarg_size 80
  .amdhsa_user_sgpr_count 2
  .amdhsa_user_sgpr_kernarg_segment_ptr 1
  .amdhsa_system_sgpr_workgroup_id_x 1
.end_amdhsa_kernel
"""
    return txt

if __name__=="__main__":
    import argparse
    ap=argparse.ArgumentParser()
    ap.add_argument('--stop',type=int,default=99)
    ap.add_argument('--prof',action='store_true')
    ap.add_argument('-o',default='interleave_layers__sliding_local_dilated__geglu_ffn__prompt.s')
    a=ap.parse_args()
    cfg.stop_after=a.stop
    cfg.prof=a.prof
    open(a.o,'w').write(build())
    print("wrote",a.o)
```

```python
import sys, os
sys.path.insert(0, os.path.dirname(os.path.abspath(__file__)))
from core import *

KNAME = "interleave_layers__sliding_local_dilated__geglu_ffn__prompt_kernel"

TEAMSZ=0x200000
FLAGS=0x0000; IDS=0x0100; HFLAGS=0x0200; EPOCH=0x0300; PF0=0x0400
STATS=0x1000
SBUF=0
HSTATS=0x11000
HALOX=0x18000
XB=[0x30000,0x30000,0x30000,0x30000]
OB=[0xB0000,0xB0000]
HB=[0xF0000,0xF0000]
WS_USED=2*TEAMSZ
TILE=32768; HTILE=172*512
RING=0; SLOT=16384; NSLOT=8
SCR=131072
KBUF=SCR; VBUF=SCR+9216
CST=158720
MISC=163328
LDS_BYTES=163840
ZERO8=MISC+16

C_GELU=-2.0*0.7978845608028654*1.4426950408889634
def f2u(x):
    import struct
    return struct.unpack('<I',struct.pack('<f',x))[0]
def hexf(x): return "0x%08x"%f2u(x)

PROF=0x1A0000
class Cfg:
    prof = False
    prof_bar = True
    realtime = False
    stop_after = 99
    LA = 5
    NA = 6
    budget = 3.0
    timeout = 1<<18
    pv = 26
    retain = True
    codepf = True
    stbranch = True
    earlytouch = False
    EB = 64
    episplit = False
    P3AHEAD = 10
    cwarm2 = False
    chalo = True
    touchL1 = False
    touchL1o = True
    ret3031 = True
    ntw3 = ''
    cwarm = False
    dbg_noepi = False
    pairwait = True
    ntact = ''
    earlywarm = True
    startord = 'F'
    bd2 = 11
    warmP3 = True
    p0fast = False
    ba2 = 20
    prof_kv = False
    prof_h = False
    warmstart = True
    hpollA = 1
    bx = 44
    dbg_delay = 0
    dbg_nohp = False
    dbg_nohl = False
    hsleep = 8
    csleep = 0
    pretouch = True
    tlbwarm = True
    halowarm = True
    s0 = 'mid'
    nt = ''
    winE = 3
    win = 3
    winL = 16
    win0 = 4
    warm = True
    PF = 6
    PF2 = 6
    PF2MAX = 28

cfg=Cfg()

def srd(S, r, lo, hi, size):
    S(f"s_mov_b32 s{r}, s{lo}")
    S(f"s_mov_b32 s{r+1}, s{hi}")
    S(f"s_mov_b32 s{r+2}, {size}")
    S(f"s_mov_b32 s{r+3}, 0x00020000")

def csel(S, dst, a, b):
    S(f"s_mov_b32 s{dst}, {a}")
    S(f"s_cselect_b32 s{dst}, s{dst}, {b}")

def mov64(S, r, val):
    S(f"s_mov_b32 s{r}, 0x{val & 0xffffffff:08x}")
    S(f"s_mov_b32 s{r+1}, 0x{(val>>32) & 0xffffffff:08x}")

def stamp(S, idx, layer_s=None, pv=None, real=False):
    if not cfg.prof: return
    pv = cfg.pv if pv is None else pv
    S.smem("s_memrealtime s[90:91]" if (real or cfg.realtime) else "s_memtime s[90:91]")
    S.force_wait(lg=True)
    if layer_s is not None:
        S(f"s_lshl_b32 s93, s{layer_s}, 8")
        S(f"s_add_u32 s93, s93, s92")
        S(f"s_add_u32 s93, s93, {idx*4}")
    else:
        S(f"s_add_u32 s93, s92, {idx*4}")
    S("s_mov_b64 exec, 1")
    S(f"v_mov_b32 v{pv}, s90")
    S(f"v_mov_b32 v{pv+1}, s93")
    S(f"buffer_store_dword v{pv}, v{pv+1}, s[28:31], 0 offen")
    S("s_mov_b64 exec, -1")

def hstamp(S, idx):
    if not cfg.prof: return
    S.smem("s_memtime s[96:97]")
    S.force_wait(lg=True)
    S(f"s_add_u32 s99, s98, {idx*4}")
    S("s_mov_b64 exec, 1")
    S("v_mov_b32 v30, s96")
    S("v_mov_b32 v31, s99")
    S("buffer_store_dword v30, v31, s[28:31], 0 offen")
    S("s_mov_b64 exec, -1")

def poll(S, voff, vtmp, srdreg, s_expect, s_mask, s_cnt, s_tmp, span=16):
    L=S.newlabel('Lpoll'); D=S.newlabel('Lpdone')
    S(f"s_mov_b32 s{s_cnt}, 0")
    S.label(L)
    S(f"buffer_load_dword v{vtmp}, v{voff}, s[{srdreg}:{srdreg+3}], 0 offen sc1")
    S(f"s_add_u32 s{s_cnt}, s{s_cnt}, 1")
    S.force_wait(vm=True)
    S(f"v_subrev_u32 v{vtmp}, s{s_expect}, v{vtmp}")
    S(f"v_cmp_gt_u32 vcc, {span}, v{vtmp}")
    S(f"s_and_b64 s[{s_tmp}:{s_tmp+1}], vcc, s[{s_mask}:{s_mask+1}]")
    S(f"s_cmp_eq_u64 s[{s_tmp}:{s_tmp+1}], s[{s_mask}:{s_mask+1}]")
    S(f"s_cbranch_scc1 {D}")
    if cfg.csleep: S(f"s_sleep {cfg.csleep}")
    S(f"s_cmp_lt_u32 s{s_cnt}, {cfg.timeout}")
    S(f"s_cbranch_scc1 {L}")
    S.label(D)
    S("s_nop 1")

def stats_to_frag(S_emit, st, vt, nm, out_rstd=None, gelu=None, s_c=None):
    ops=[]
    a=lambda t,c=1: ops.append((c,t))
    idx_s=[st[2*i] for i in range(16)]; idx_q=[st[2*i+1] for i in range(16)]
    for arr in (idx_s, idx_q):
        n=16
        cur=list(arr)
        while len(cur)>1:
            nxt=[]
            for i in range(0,len(cur),2):
                a(f"v_add_f32 v{cur[i]}, v{cur[i]}, v{cur[i+1]}")
                nxt.append(cur[i])
            cur=nxt
    s=idx_s[0]; q=idx_q[0]
    t0,t1,t2,t3=vt
    a(f"v_mul_f32 v{t0}, {hexf(1/512)}, v{s}")
    a(f"v_mul_f32 v{t1}, {hexf(1/512)}, v{q}")
    a(f"v_fma_f32 v{t1}, -v{t0}, v{t0}, v{t1}")
    a(f"v_max_f32 v{t1}, 0, v{t1}")
    a(f"v_cvt_pk_bf16_f32 v{t2}, v{t0}, v{t0}")
    a(f"v_cvt_pk_bf16_f32 v{t1}, v{t1}, v{t1}")
    a(f"v_xor_b32 v{nm}, 0x80008000, v{t2}")
    a(f"v_and_b32 v{t1}, 0xffff0000, v{t1}")
    a(f"v_and_b32 v{nm+1}, 0xffff, v{nm}")
    a(f"v_add_f32 v{t1}, {hexf(1e-5)}, v{t1}")
    a(f"v_cvt_pk_bf16_f32 v{t1}, v{t1}, v{t1}")
    a(f"v_and_b32 v{t1}, 0xffff0000, v{t1}")
    a(f"v_sqrt_f32 v{t1}, v{t1}",2)
    a(f"v_cvt_pk_bf16_f32 v{t1}, v{t1}, v{t1}")
    a(f"v_and_b32 v{t1}, 0xffff0000, v{t1}")
    if gelu is None:
        a(f"v_rcp_f32 v{out_rstd}, v{t1}",2)
    else:
        A,B,inv=gelu
        a(f"v_rcp_f32 v{t0}, v{t1}",2)
        a(f"v_mul_f32 v{inv}, v{t1}, v{t1}")
        a(f"v_mul_f32 v{A}, {hexf(C_GELU)}, v{t0}")
        a(f"v_mul_f32 v{t2}, v{t0}, v{t0}")
        a(f"v_mul_f32 v{t2}, {hexf(0.044715)}, v{t2}")
        a(f"v_mul_f32 v{B}, v{A}, v{t2}")
    return ops

def mfma_stream(S, steps, fillers, ring_base=40):
    LA=cfg.LA; NA=cfg.NA
    n=len(steps)
    atok=[None]*n; areg=[None]*n
    ringi=[0]
    def issue_reads(i):
        st=steps[i]
        if st.get('pre_reads'): st['pre_reads'](S)
        a=st['a']
        if a[0]=='tr':
            r=ring_base+4*(ringi[0]%NA); ringi[0]+=1
            S(f"ds_read_b64_tr_b16 v[{r}:{r+1}], v{a[1]} offset:{a[2]}")
            atok[i]=S(f"ds_read_b64_tr_b16 v[{r+2}:{r+3}], v{a[1]} offset:{a[2]+st.get('a2',256)}")
            areg[i]=r
        else:
            areg[i]=a[1]
    fi=[0]
    def emit_fill(i, budget):
        used=0
        while fi[0]<len(fillers):
            ms,cost,f=fillers[fi[0]]
            if ms>i: break
            if used+cost>budget+1e-9 and used>0: break
            if used>=budget: break
            if callable(f): f(S)
            else: S(f)
            used+=cost; fi[0]+=1
    for i in range(min(LA,n)): issue_reads(i)
    for i in range(n):
        st=steps[i]
        if st.get('need_fill') is not None:
            while fi[0]<st['need_fill']:
                ms,cost,f=fillers[fi[0]]
                if callable(f): f(S)
                else: S(f)
                fi[0]+=1
        toks=[atok[i]]
        if cfg.pairwait and i%2==0 and i+1<n and atok[i+1] is not None: toks.append(atok[i+1])
        if st['a'][0]=='reg' and st['a'][2] is not None: toks.append(st['a'][2]())
        if st.get('btok'): toks.append(st['btok']())
        S.wait(*toks)
        shape='32x32x16' if st.get('shape',32)==32 else '16x16x32'
        nacc=16 if shape=='32x32x16' else 4
        S(f"v_mfma_f32_{shape}_bf16 v[{st['acc']}:{st['acc']+nacc-1}], v[{areg[i]}:{areg[i]+3}], v[{st['b']}:{st['b']+3}], {st['c']}")
        if i+LA<n: issue_reads(i+LA)
        b=cfg.budget
        if st.get('post'):
            st['post'](S); b-=st.get('postcost',1)
        if st.get('after'): st['after'](S); b-=1
        emit_fill(i,b)
    while fi[0]<len(fillers):
        ms,cost,f=fillers[fi[0]]
        if callable(f): f(S)
        else: S(f)
        fi[0]+=1

PBAR={'J1':28,'J2':30,'J3':32,'J4':34,'J5':36,'J6':38,'J7':40,'K1':44,'K2':46,'K3':48,'K4':50,'K5':52,'Bb':54,'Ba2':58}
def pbar(S,name):
    if cfg.prof and cfg.prof_bar:
        stamp(S,PBAR[name],48); S.barrier(name); stamp(S,PBAR[name]+1,48)
    else:
        S.barrier(name)

def accs(base): return f"v[{base}:{base+15}]"

def gen_prologue():
    S=Stream('P')
    S("s_cmp_ge_u32 s2, 256")
    S("s_cbranch_scc1 L_end")
    S.smem("""s_load_dwordx4 s[4:7], s[0:1], 0
s_load_dwordx2 s[8:9], s[0:1], 16
s_load_dwordx4 s[12:15], s[0:1], 32
s_load_dwordx2 s[10:11], s[0:1], 48
s_load_dwordx2 s[16:17], s[0:1], 56
s_load_dwordx2 s[18:19], s[0:1], 72""")
    S("v_lshrrev_b32 v1, 6, v0")
    S("v_and_b32 v0, 63, v0")
    S("v_readfirstlane_b32 s20, v1")
    S("s_and_b32 s25, s2, 7")
    S("s_lshr_b32 s26, s2, 3")
    S("s_lshr_b32 s27, s26, 4")
    S("s_lshl_b32 s21, s25, 1")
    S("s_add_u32 s21, s21, s27")
    S("s_and_b32 s22, s26, 15")
    S("s_lshl_b32 s25, s21, 21")
    S.items.append(Ins("s_waitcnt lgkmcnt(0)"))
    S("s_add_u32 s18, s18, s25")
    S("s_addc_u32 s19, s19, 0")
    S(f"s_mov_b32 s25, {EPOCH}")
    S(f"s_mov_b32 s26, {EPOCH+TEAMSZ}")
    S.smem("""s_load_dword s23, s[18:19], s25
s_load_dword s24, s[18:19], s26""")
    srd(S,28,18,19,WS_USED)
    if cfg.prof:
        S('s_lshl_b32 s92, s22, 3'); S('s_add_u32 s92, s92, s20'); S('s_lshl_b32 s92, s92, 9'); S(f's_add_u32 s92, s92, {PROF}')
    S("v_lshlrev_b32 v1, 4, v0")
    if cfg.codepf:
        S("s_getpc_b64 s[96:97]")
        S.label("L_pc")
        S("s_lshr_b32 s25, s2, 3")
        S("s_lshl_b32 s25, s25, 3")
        S("s_add_u32 s25, s25, s20")
        S("s_and_b32 s25, s25, 63")
        S("s_lshl_b32 s25, s25, 10")
        S("v_add_u32 v2, s25, v1")
        S("v_min_u32 v2, CODE_LAST, v2")
        S("global_load_dwordx4 v[252:255], v2, s[96:97]")
    S("s_cmp_ge_u32 s20, 4")
    S("s_cbranch_scc1 L_helper")
    return S

NITEMS=35
def slot_imm(i):
    return (i*SLOT)

def gen_C():
    S=Stream('C')
    S("s_nop 4")
    S("s_setprio 2")
    srd(S,40,4,5,2048*1024)
    srd(S,44,16,17,2048*1024)
    srd(S,32,18,19,0)
    srd(S,36,18,19,WS_USED)
    S("s_and_b32 s50, s20, 1")
    S("s_lshr_b32 s51, s20, 1")
    S("s_lshr_b32 s52, s22, 3")
    S("s_and_b32 s53, s22, 7")
    S("s_mov_b32 s54, s20")
    S("s_lshl_b32 s55, s52, 1")
    S("s_add_u32 s55, s55, s50")
    S("s_lshl_b32 s98, s21, 2")
    S("s_add_u32 s98, s98, s55")
    S("v_lshrrev_b32 v2, 5, v0")
    S("v_lshlrev_b32 v2, 9, v2")
    S("v_and_b32 v7, 15, v0")
    S("v_lshrrev_b32 v7, 2, v7")
    S("v_lshl_add_u32 v2, v7, 6, v2")
    S("v_bfe_u32 v7, v0, 4, 1")
    S("v_lshl_add_u32 v2, v7, 5, v2")
    S("v_and_b32 v7, 3, v0")
    S("v_lshl_add_u32 v2, v7, 3, v2")
    S(f"s_mov_b32 s57, {FLAGS}")
    S("v_lshlrev_b32 v3, 2, v0")
    S("v_add_u32 v3, s57, v3")
    S("s_lshl_b32 s58, s22, 4")
    S("s_lshl_b32 s59, s20, 2")
    S("s_add_u32 s58, s58, s59")
    S("s_add_u32 s58, s58, s57")
    S("v_mov_b32 v4, s58")
    for r in (30,31,34,35,38,39): S(f"v_mov_b32 v{r}, 0")
    stamp(S,0)
    if cfg.tlbwarm:
        S("v_mov_b32 v8, 0")
        S("s_mov_b64 exec, 1")
        S("buffer_load_dword v120, v8, s[44:47], 0 offen")
        S(f"buffer_load_dword v121, v8, s[28:31], 0 offen offset:{0x800}")
        S("s_mov_b64 exec, -1")
    S("v_lshrrev_b32 v8, 2, v0")
    S("v_and_b32 v9, 3, v0")
    S("s_lshl_b32 s57, s22, 6")
    S("v_lshlrev_b32 v10, 4, v9")
    S("v_add_u32 v10, s57, v10")
    S("s_lshl_b32 s57, s21, 7")
    S("s_lshl_b32 s58, s20, 5")
    S("s_add_u32 s58, s58, s57")
    S("v_add_u32 v11, s58, v8")
    S("v_lshl_add_u32 v11, v11, 10, v10")
    tA=S("buffer_load_dwordx4 v[16:19], v11, s[40:43], 0 offen")
    S("v_add_u32 v12, 0x4000, v11")
    tB=S("buffer_load_dwordx4 v[20:23], v12, s[40:43], 0 offen")
    S("s_sub_i32 s59, s57, 16")
    S("v_add_u32 v12, s59, v8")
    S("v_max_i32 v12, 0, v12")
    S("v_lshl_add_u32 v12, v12, 10, v10")
    tH=S("buffer_load_dwordx4 v[24:27], v12, s[40:43], 0 offen")
    if cfg.p0fast:
        S("s_lshl_b32 s57, s54, 15"); S("s_lshl_b32 s58, s22, 11"); S("s_add_u32 s57, s57, s58")
        S(f"s_add_u32 s59, s58, {HALOX}"); S(f"s_add_u32 s57, s57, {XB[0]}")
        S("buffer_load_dword v100, v1, s[28:31], s57 offen"); S("buffer_load_dword v100, v1, s[28:31], s57 offen offset:1024")
        S("buffer_load_dword v100, v1, s[28:31], s59 offen"); S("buffer_load_dword v100, v1, s[28:31], s59 offen offset:1024")
        S("s_lshr_b32 s60, s22, 1"); S("s_lshl_b32 s60, s60, 9")
        S("s_lshl_b32 s57, s54, 12"); S("s_add_u32 s57, s57, s60"); S(f"s_add_u32 s57, s57, {STATS}"); S(f"s_add_u32 s59, s60, {HSTATS}")
        S("s_mov_b64 exec, 0xffffffff")
        S("buffer_load_dword v100, v1, s[28:31], s57 offen"); tH=S("buffer_load_dword v100, v1, s[28:31], s59 offen")
        S("s_mov_b64 exec, -1")
    if cfg.cwarm2:
        for (r,lo,hi,nb) in ((72,8,9,512*512*2),(76,12,13,512*1376*2),(80,14,15,512*1376*2),(84,10,11,1376*512*2)):
            srd(S,r,lo,hi,nb)
            kb=-(-nb//1024); per=-(-kb//1024)
            S("s_lshl_b32 s57, s2, 2"); S("s_add_u32 s57, s57, s20")
            S(f"s_mul_i32 s57, s57, {per*1024}")
            for c in range(per): S(f"buffer_load_dword v100, v1, s[{r}:{r+3}], s57 offen offset:{c*1024}")
    S.items.append(Ins("s_waitcnt lgkmcnt(0)"))
    stamp(S,56,pv=102)
    S("s_getreg_b32 s60, hwreg(HW_REG_XCC_ID)")
    S("s_and_b32 s60, s60, 7")
    S("s_add_u32 s60, s60, s23")
    S("s_add_u32 s89, s60, 16")
    S(f"s_mov_b32 s57, {IDS}")
    S("s_lshl_b32 s58, s22, 2")
    S("s_add_u32 s58, s58, s57")
    S("v_mov_b32 v14, s58")
    S("v_mov_b32 v15, s89")
    S("s_mov_b64 exec, 1")
    S("buffer_store_dword v15, v14, s[28:31], 0 offen sc1")
    S("s_mov_b64 exec, -1")
    if cfg.s0=='early': S.barrier("S0")
    S.wait(tH)
    stamp(S,57,pv=102)
    if cfg.p0fast:
        S(f"s_mov_b32 s57, {IDS}")
        S("v_lshlrev_b32 v101, 2, v0")
        S("v_add_u32 v101, s57, v101")
        tid=S("buffer_load_dword v103, v101, s[28:31], 0 offen sc1")
    S("v_mov_b32 v7, 0x3f803f80")
    outs=[]
    for gi,(base) in enumerate((16,20,24)):
        sm=64+2*gi; sq=65+2*gi
        S(f"v_dot2_f32_bf16 v{sm}, v{base}, v7, 0")
        S(f"v_dot2_f32_bf16 v{sq}, v{base}, v{base}, 0")
        for d in range(1,4):
            S(f"v_dot2_f32_bf16 v{sm}, v{base+d}, v7, v{sm}")
            S(f"v_dot2_f32_bf16 v{sq}, v{base+d}, v{base+d}, v{sq}")
    for qp in ("[1,0,3,2]","[2,3,0,1]"):
        for r in range(64,70):
            S(f"v_add_f32_dpp v{r}, v{r}, v{r} quad_perm:{qp} row_mask:0xf bank_mask:0xf")
    mov64(S,66,0x2222222222222222)
    for gi in range(3):
        S(f"v_cndmask_b32 v{72+gi}, v{64+2*gi}, v{65+2*gi}, s[66:67]")
    if cfg.p0fast:
        S.wait(tid)
        mov64(S,64,0xFFFF)
        S("v_cmp_eq_u32 vcc, s89, v103")
        S("s_and_b64 s[66:67], vcc, s[64:65]")
        S("s_cmp_eq_u64 s[66:67], s[64:65]")
        S(f"s_cselect_b32 s34, {WS_USED}, 0")
        S(f"s_cselect_b32 s38, 0, {WS_USED}")
        if os.environ.get('FORCE_SLOW'):
            S("s_mov_b32 s34, 0"); S(f"s_mov_b32 s38, {WS_USED}")
    S("v_lshlrev_b32 v12, 9, v9")
    S("v_lshl_add_u32 v12, v8, 4, v12")
    S("v_lshlrev_b32 v13, 2, v9")
    S("v_lshl_add_u32 v13, v8, 4, v13")
    S("s_lshl_b32 s57, s54, 15")
    S("s_lshl_b32 s58, s22, 11")
    S("s_add_u32 s57, s57, s58")
    S(f"s_add_u32 s57, s57, {XB[0]}")
    S(f"s_add_u32 s59, s58, {HALOX}")
    def stm(lst):
        if not cfg.stbranch:
            for (data,voff,soff,imm,w) in lst:
                so=f"s{soff}" if soff is not None else "0"
                S(f"buffer_store_dword{w} {data}, v{voff}, s[32:35], {so} offen offset:{imm}")
                S(f"buffer_store_dword{w} {data}, v{voff}, s[36:39], {so} offen offset:{imm} sc1")
            return
        Ls=S.newlabel('Lsts'); Ld=S.newlabel('Lstd')
        S("s_cmp_eq_u32 s34, 0")
        S(f"s_cbranch_scc1 {Ls}")
        for (data,voff,soff,imm,w) in lst:
            so=f"s{soff}" if soff is not None else "0"
            S(f"buffer_store_dword{w} {data}, v{voff}, s[28:31], {so} offen offset:{imm}")
        S(f"s_branch {Ld}")
        S.label(Ls)
        n=S.vm_issued
        for (data,voff,soff,imm,w) in lst:
            so=f"s{soff}" if soff is not None else "0"
            S.items.append(Ins(f"buffer_store_dword{w} {data}, v{voff}, s[28:31], {so} offen offset:{imm} sc1"))
        S.label(Ld)
    def st2(data, voff, soff, imm, w='x4'):
        stm([(data,voff,soff,imm,w)])
    def st1(data, voff, soff, imm, w='x4'):
        S(f"buffer_store_dword{w} {data}, v{voff}, s[28:31], s{soff} offen offset:{imm} sc1")
    stP=st2 if cfg.p0fast else st1
    stP("v[16:19]",12,57,0); stP("v[20:23]",12,57,256); stP("v[24:27]",12,59,256)
    S("s_lshr_b32 s60, s22, 1")
    S("s_lshl_b32 s60, s60, 9")
    S("s_and_b32 s61, s22, 1")
    S("s_lshl_b32 s61, s61, 3")
    S("s_add_u32 s60, s60, s61")
    S("s_lshl_b32 s57, s54, 12")
    S("s_add_u32 s57, s57, s60")
    S(f"s_add_u32 s57, s57, {STATS}")
    S(f"s_add_u32 s59, s60, {HSTATS}")
    mov64(S,66,0x3333333333333333)
    S("s_mov_b64 exec, s[66:67]")
    stP("v72",13,57,0,''); stP("v73",13,57,256,''); stP("v74",13,59,256,'')
    S("s_mov_b64 exec, -1")
    stamp(S,58,pv=102)
    S("s_mov_b32 s49, 1")
    def set_flag():
        S.force_wait(vm=True)
        S("s_add_u32 s57, s23, s49")
        S("v_mov_b32 v7, s57")
        S("s_mov_b64 exec, 1")
        stm([("v7",4,None,0,'')])
        S("s_mov_b64 exec, -1")
    if cfg.s0=='mid': S.barrier("S0")
    S.force_wait(vm=True)
    S("s_add_u32 s57, s23, s49")
    S("v_mov_b32 v7, s57")
    S("s_lshl_b32 s57, s20, 6")
    S("s_lshl_b32 s58, s22, 2")
    S("s_add_u32 s57, s57, s58")
    S(f"s_add_u32 s57, s57, {PF0}")
    S("v_mov_b32 v8, s57")
    S("s_mov_b64 exec, 1")
    if cfg.p0fast:
        S("buffer_store_dword v7, v8, s[32:35], 0 offen")
        S("buffer_store_dword v7, v8, s[36:39], 0 offen sc1")
    else:
        S("buffer_store_dword v7, v8, s[28:31], 0 offen sc1")
    S("s_mov_b64 exec, -1")
    if cfg.s0=='late': S.barrier("S0")
    stamp(S,1)
    if cfg.cwarm:
        for (r,lo,hi,nb) in ((72,8,9,512*512*2),(76,12,13,512*1376*2),(80,14,15,512*1376*2),(84,10,11,1376*512*2)):
            srd(S,r,lo,hi,nb)
            kb=-(-nb//1024); per=-(-kb//1024)
            S("s_lshl_b32 s57, s2, 2"); S("s_add_u32 s57, s57, s20")
            S(f"s_mul_i32 s57, s57, {per*1024}")
            for c in range(per): S(f"buffer_load_dword v100, v1, s[{r}:{r+3}], s57 offen offset:{c*1024}")
        S("s_lshl_b32 s57, s20, 15"); S("s_lshl_b32 s58, s22, 11"); S("s_add_u32 s57, s57, s58"); S(f"s_add_u32 s57, s57, {OB[0]}")
        for c in range(2): S(f"buffer_load_dword v100, v1, s[28:31], s57 offen offset:{c*1024}")
        S("s_lshl_b32 s57, s22, 3"); S("s_mul_hi_u32 s57, s57, 0x55555556"); S("s_lshl_b32 s57, s57, 11")
        S(f"s_mul_i32 s58, s20, {HTILE}"); S("s_add_u32 s57, s57, s58"); S(f"s_add_u32 s57, s57, {HB[0]}")
        for c in range(6):
            S(f"buffer_load_dword v100, v1, s[28:31], s57 offen offset:{(c%4)*1024}")
            if c==3: S("s_add_u32 s57, s57, 4096")
    if cfg.stop_after==0:
        S("s_branch L_fin"); return S
    S("s_mov_b32 s94, 0")
    S("s_mov_b32 s48, 0")
    S.label("L_layer")
    S("s_nop 4")
    S.vm_done=S.vm_issued; S.lg_done=S.lg_issued
    S.force_wait(vm=True,lg=True)
    S(f"s_mul_i32 s56, s48, {(NITEMS*SLOT)&0x1ffff}")
    def layer_offsets():
        S("s_cmp_eq_u32 s48, 0")
        csel(S,70,XB[0],XB[2])
        csel(S,71,STATS,STATS+2*SBUF)
        csel(S,72,OB[0],OB[1])
        csel(S,73,XB[1],XB[3])
        csel(S,74,STATS+SBUF,STATS+SBUF)
        csel(S,75,HB[0],HB[1])
    def slot(dst_s, i, extra_s=None, extra_imm=0):
        S(f"s_add_u32 s{dst_s}, s56, {i*SLOT}")
        if extra_s is not None: S(f"s_add_u32 s{dst_s}, s{dst_s}, s{extra_s}")
        S(f"s_and_b32 s{dst_s}, s{dst_s}, 0x1ffff")
        if extra_imm: S(f"s_add_u32 s{dst_s}, s{dst_s}, {extra_imm}")
    def setaddr(vreg, i, extra_s=None, add_s=None):
        def f(S):
            slot(57,i,extra_s)
            if add_s is not None: S(f"s_add_u32 s57, s57, s{add_s}")
            S(f"v_add_u32 v{vreg}, s57, v2")
        return f
    def setaddr2(vreg, i, extra_s=None, add_s=None):
        def f(S):
            slot(57,i,extra_s)
            if add_s is not None: S(f"s_add_u32 s57, s57, s{add_s}")
            S(f"v_add_u32 v{vreg}, s57, v{12 if vreg==5 else 13}")
        return f
    def expect():
        S("s_add_u32 s68, s23, s49")
    def bump(): S("s_add_u32 s49, s49, 1")

    Lv1=S.newlabel('Lp1v'); Ld1=S.newlabel('Lp1d'); Lsp=S.newlabel('Lp1s')
    S("s_cmp_eq_u32 s48, 0")
    S(f"s_cbranch_scc0 {Lv1}")
    S("s_lshl_b32 s57, s20, 6")
    S(f"s_add_u32 s57, s57, {PF0}")
    S("s_add_u32 s66, s18, s57")
    S("s_addc_u32 s67, s19, 0")
    S("s_add_u32 s68, s23, 1")
    S("s_mov_b32 s69, 0")
    S.label(Lsp)
    S.smem("s_load_dwordx16 s[72:87], s[66:67], 0 glc")
    S("s_add_u32 s69, s69, 1")
    S.items.append(Ins("s_waitcnt lgkmcnt(0)"))
    for i in range(16): S(f"s_xor_b32 s{72+i}, s{72+i}, s68")
    for st_ in (8,4,2,1):
        for i in range(st_): S(f"s_or_b32 s{72+i}, s{72+i}, s{72+i+st_}")
    S("s_cmp_eq_u32 s72, 0")
    S(f"s_cbranch_scc1 {Ld1}")
    S("s_sleep 2")
    S(f"s_cmp_lt_u32 s69, {cfg.timeout}")
    S(f"s_cbranch_scc1 {Lsp}")
    S(f"s_branch {Ld1}")
    S.label(Lv1)
    S("s_mov_b32 s58, 0x55555555")
    S("s_lshl_b32 s58, s58, s50")
    S("s_cmp_eq_u32 s51, 0")
    S("s_cselect_b32 s64, s58, 0")
    S("s_cselect_b32 s65, 0, s58")
    expect()
    poll(S,3,7,28,68,64,69,66)
    if cfg.chalo:
        S("s_cmp_lg_u32 s20, 0")
        S(f"s_cbranch_scc1 {Ld1}")
        S("s_cmp_eq_u32 s21, 0")
        S(f"s_cbranch_scc1 {Ld1}")
        S("v_lshlrev_b32 v8, 2, v0")
        S(f"v_add_u32 v8, {HFLAGS+64}, v8")
        mov64(S,64,0xFFFF)
        S("s_add_u32 s68, s23, 1")
        poll(S,8,7,28,68,64,69,66,span=1)
    S.label(Ld1)
    S("s_nop 1")
    layer_offsets()
    S.vm_done=S.vm_issued-0
    stamp(S,2,48)
    S("s_lshl_b32 s78, s54, 15")
    S("s_add_u32 s78, s78, s70")
    S("s_lshl_b32 s79, s54, 12")
    S("s_add_u32 s79, s79, s71")
    btok={}
    def ldfrag(s, sbase=78):
        def f(S):
            if s%4==0 and s>0: S(f"s_add_u32 s{sbase}, s{sbase}, 4096")
            btok[s]=S(f"buffer_load_dwordx4 v[{128+4*(s%32)}:{131+4*(s%32)}], v1, s[28:31], s{sbase} offen offset:{(s%4)*1024} sc1{cfg.ntact}")
        return f
    PF=cfg.PF
    for s in range(PF): ldfrag(s)(S)
    S("v_and_b32 v7, 31, v0")
    S("v_lshlrev_b32 v7, 4, v7")
    st_regs=list(range(96,128))
    stt={}
    def ldstat(u):
        def f(S): stt[u]=S(f"buffer_load_dwordx4 v[{96+4*u}:{99+4*u}], v7, s[28:31], s79 offen offset:{u*512} sc1")
        return f
    def load_sched():
        q=[('f',i) for i in range(PF,PF+6)]+[('s',u) for u in range(8)]+[('f',i) for i in range(PF+6,32)]
        return q
    def mkpost(item):
        k,i=item
        return (ldfrag(i),1.5 if i%4==0 else 1) if k=='f' else (ldstat(i),1)
    S.barrier("Ba")
    stamp(S,3,48)
    AK,AV,AQ=64,80,96
    steps=[]; fill=[]; lq=load_sched()
    for s in range(32):
        for t,(acc,vr,it) in enumerate(((AK,5,0),(AV,6,1))):
            d=dict(acc=acc,c=('0' if s==0 else accs(acc)),a=('tr',vr,(s%16)*1024),b=128+4*s,btok=(lambda s=s: btok[s]))
            if s%16==0: d['pre_reads']=setaddr(vr, it+2*(s//16))
            if lq:
                d['post'],d['postcost']=mkpost(lq.pop(0))
            steps.append(d)
    steps[cfg.ba2]['after']=(lambda S: pbar(S,"Ba2"))
    if cfg.prof and cfg.prof_kv:
        for k,ix in ((3,59),(11,60),(19,61),(35,62),(51,63)):
            steps[k]['after']=(lambda S,ix=ix: stamp(S,ix,48))
    def waitst(S): S.wait(stt[7])
    fill.append((30,0,waitst))
    for c,t in stats_to_frag(S, st_regs, (8,9,10,11), 28, out_rstd=12): fill.append((30,c,t))
    nstat_fill=len(fill)
    cstok={}
    def after_kv(S):
        pbar(S,"Bb")
        S(f"v_lshlrev_b32 v13, 3, v0")
        S(f"v_add_u32 v13, {CST}, v13")
        cstok['k']=S(f"ds_read_b64 v[32:33], v13 offset:{0*512}")
        cstok['v']=S(f"ds_read_b64 v[36:37], v13 offset:{1*512}")
        if True:
            S(f"s_mov_b32 s57, {IDS}")
            S("v_lshlrev_b32 v27, 2, v0")
            S("v_add_u32 v27, s57, v27")
            cstok['id']=S("buffer_load_dword v127, v27, s[28:31], 0 offen sc1")
    steps[-1]['after']=after_kv
    nkv=len(steps)
    qsteps=[]
    for s in range(32):
        d=dict(acc=AQ,c=('0' if s==0 else accs(AQ)),a=('tr',5,(s%16)*1024),b=128+4*s)
        if s%16==0: d['pre_reads']=setaddr(5, 4+s//16)
        qsteps.append(d)
    qsteps[0]['need_fill']=nstat_fill
    corrK=dict(acc=AK,c=accs(AK),a=('reg',32,lambda: cstok['k']),b=28)
    corrV=dict(acc=AV,c=accs(AV),a=('reg',36,lambda: cstok['v']),b=28)
    def rdq(S): cstok['q']=S(f"ds_read_b64 v[32:33], v13 offset:{2*512}")
    corrV['post']=rdq
    corrQ=dict(acc=AQ,c=accs(AQ),a=('reg',32,lambda: cstok['q']),b=28)
    steps += qsteps[:4]+[corrK,corrV]+qsteps[4:]+[corrQ]
    kvdone=nkv+4+2+3
    S_k=[]
    for hd in range(2):
        for i in range(8):
            fill.append((kvdone,1,f"v_mul_f32 v{AK+8*hd+i}, v{AK+8*hd+i}, v12"))
        for i in range(4):
            fill.append((kvdone,1,f"v_cvt_pk_bf16_f32 v{16+4*hd+i}, v{AK+8*hd+2*i}, v{AK+8*hd+2*i+1}"))
    def kvaddr(S):
        S("v_and_b32 v14, 31, v0")
        S("s_lshl_b32 s57, s20, 5")
        S("s_add_u32 s57, s57, 16")
        S("v_add_u32 v14, s57, v14")
        S("v_lshlrev_b32 v14, 4, v14")
        S(f"v_add_u32 v14, {SCR}, v14")
        S("v_lshrrev_b32 v15, 5, v0")
        S("v_mul_u32_u24 v15, 2304, v15")
        S("v_add_u32 v24, v14, v15")
        S("v_add_u32 v25, v24, v15")
    fill.append((kvdone,7,kvaddr))
    for hd in range(2):
        fill.append((kvdone,1,f"ds_write_b128 v24, v[{16+4*hd}:{19+4*hd}] offset:{KBUF-SCR+hd*4608}"))
    for q in range(4):
        for i in range(4):
            fill.append((kvdone,1,f"v_mul_f32 v{AV+4*q+i}, v{AV+4*q+i}, v12"))
        hd,part=q//2,q%2
        fill.append((kvdone,1,f"ds_write_b128 v25, v[{AV+4*q}:{AV+4*q+3}] offset:{VBUF-SCR+hd*9216+part*2304}"))
    mfma_stream(S,steps,fill)
    stamp(S,4,48)
    for i in range(16): S(f"v_mul_f32 v{AQ+i}, v{AQ+i}, v12")
    for i in range(8): S(f"v_cvt_pk_bf16_f32 v{112+i}, v{AQ+2*i}, v{AQ+2*i+1}")
    if True:
        Lok=S.newlabel('Lidok'); Lrt=S.newlabel('Lidretry')
        S.wait(cstok['id'])
        mov64(S,64,0xFFFF)
        S("s_add_u32 s68, s23, 16")
        S("v_subrev_u32 v126, s68, v127")
        S("v_cmp_gt_u32 vcc, 8, v126")
        S("s_and_b64 s[66:67], vcc, s[64:65]")
        S("s_cmp_eq_u64 s[66:67], s[64:65]")
        S(f"s_cbranch_scc1 {Lok}")
        poll(S,27,126,28,68,64,69,66,span=8)
        S.label(Lok)
        S("s_sub_u32 s57, s89, s68")
        S("v_cmp_eq_u32 vcc, s57, v126")
        S("s_and_b64 s[66:67], vcc, s[64:65]")
        S("s_cmp_eq_u64 s[66:67], s[64:65]")
        S(f"s_cselect_b32 s34, {WS_USED}, 0")
        S(f"s_cselect_b32 s38, 0, {WS_USED}")
        if os.environ.get('FORCE_SLOW'):
            S("s_mov_b32 s34, 0"); S(f"s_mov_b32 s38, {WS_USED}")
    S("v_mov_b32 v126, s34"); S(f"v_mov_b32 v125, {MISC+32}")
    S("ds_write_b32 v125, v126")
    S.wait(lg_all=True)
    S.barrier("Bc")
    stamp(S,5,48)
    S("v_subrev_u32 v24, 224, v24")
    S("v_subrev_u32 v25, 224, v25")
    KU=[128+4*i for i in range(16)]
    ktok={}
    for hd in range(2):
        for w in range(8):
            if hd==1 and w==7: S.wait(ktok[(0,0)])
            ktok[(hd,w)]=S(f"ds_read_b128 v[{KU[hd*8+w]}:{KU[hd*8+w]+3}], v24 offset:{KBUF-SCR+hd*4608+(14-2*w)*16}")
    SA=[192+i for i in range(8)]; SB=[200+i for i in range(8)]
    for hd,SS in ((0,SA),(1,SB)):
        S.wait(ktok[(hd,7)])
        for d in range(4):
            for w in range(8):
                k=KU[hd*8+w]+d
                S(f"v_dot2_f32_bf16 v{SS[w]}, v{112+4*hd+d}, v{k}, {'0' if d==0 else 'v%d'%SS[w]}")
    VU0=[208+4*i for i in range(12)]+[64+4*i for i in range(4)]
    VU1=[128+4*i for i in range(16)]
    vtok={}
    def rdV(hd,VU,lo,hi):
        for idx in range(lo,hi):
            w,part=idx//2,idx%2
            vtok[(hd,w,part)]=S(f"ds_read_b128 v[{VU[idx]}:{VU[idx]+3}], v25 offset:{VBUF-SCR+hd*9216+part*2304+(14-2*w)*16}")
    rdV(0,VU0,0,14)
    for w in range(8): S(f"v_permlane32_swap_b32 v{SA[w]}, v{SB[w]}")
    for w in range(8): S(f"v_add_f32 v{SA[w]}, v{SA[w]}, v{SB[w]}")
    Lm=S.newlabel('Lnomask')
    S("s_lshl_b32 s57, s21, 2")
    S("s_add_u32 s57, s57, s20")
    S("s_cmp_lg_u32 s57, 0")
    S(f"s_cbranch_scc1 {Lm}")
    S("v_and_b32 v7, 31, v0")
    S(f"v_mov_b32 v26, {hexf(-4e9)}")
    for w in range(1,8):
        S(f"v_cmp_gt_u32 vcc, {2*w}, v7")
        S(f"v_cndmask_b32 v{SA[w]}, v{SA[w]}, v26, vcc")
    S.label(Lm)
    S("s_nop 1")
    cs=0.25*1.4426950408889634
    S(f"v_max3_f32 v26, v{SA[0]}, v{SA[1]}, v{SA[2]}")
    S(f"v_max3_f32 v27, v{SA[3]}, v{SA[4]}, v{SA[5]}")
    S(f"v_max3_f32 v26, v26, v{SA[6]}, v{SA[7]}")
    S(f"v_max_f32 v26, v26, v27")
    S(f"s_mov_b32 s57, {hexf(cs)}")
    S(f"v_mul_f32 v26, {hexf(-cs)}, v26")
    for w in range(8): S(f"v_fma_f32 v{SA[w]}, v{SA[w]}, s57, v26")
    for w in range(8): S(f"v_exp_f32 v{SA[w]}, v{SA[w]}")
    S.wait(vtok[(0,0,1)])
    rdV(0,VU0,14,16)
    S(f"v_add_f32 v26, v{SA[0]}, v{SA[1]}")
    S(f"v_add_f32 v27, v{SA[2]}, v{SA[3]}")
    S(f"v_add_f32 v15, v{SA[4]}, v{SA[5]}")
    S(f"v_add_f32 v14, v{SA[6]}, v{SA[7]}")
    S(f"v_add_f32 v26, v26, v27")
    S(f"v_add_f32 v15, v15, v14")
    S(f"v_add_f32 v26, v26, v15")
    S(f"v_rcp_f32 v26, v26")
    for w in range(8): S(f"v_mul_f32 v{SA[w]}, v{SA[w]}, v26")
    for w in range(8): S(f"v_mov_b32 v{SB[w]}, v{SA[w]}")
    for w in range(8): S(f"v_permlane32_swap_b32 v{SA[w]}, v{SB[w]}")
    def pv(hd,VU,P,cb=None):
        for w in range(8):
            p=P[w]; pe=p&~1
            sel = ("op_sel:[0,0,0] op_sel_hi:[1,0,1]","op_sel:[0,0] op_sel_hi:[1,0]") if p%2==0 else ("op_sel:[0,1,0] op_sel_hi:[1,1,1]","op_sel:[0,1] op_sel_hi:[1,1]")
            for part in range(2):
                S.wait(vtok[(hd,w,part)])
                u=VU[2*w+part]
                for hh in range(2):
                    o=96+8*hd+4*part+2*hh
                    if w==0:
                        S(f"v_pk_mul_f32 v[{o}:{o+1}], v[{u+2*hh}:{u+2*hh+1}], v[{pe}:{pe+1}] {sel[1]}")
                    else:
                        S(f"v_pk_fma_f32 v[{o}:{o+1}], v[{u+2*hh}:{u+2*hh+1}], v[{pe}:{pe+1}], v[{o}:{o+1}] {sel[0]}")
                if cb: cb(2*w+part)
    pv(0,VU0,SA,cb=lambda idx: (rdV(1,VU1,idx-2,idx-1) if idx>=2 else None))
    rdV(1,VU1,14,15)
    S.wait(vtok[(1,0,0)])
    rdV(1,VU1,15,16)
    pv(1,VU1,SB)
    for i in range(8): S(f"v_cvt_pk_bf16_f32 v{16+i}, v{96+2*i}, v{97+2*i}")
    for b in (16,20):
        S(f"v_permlane32_swap_b32 v{b}, v{b+2}")
        S(f"v_permlane32_swap_b32 v{b+1}, v{b+3}")
    S("s_lshl_b32 s57, s54, 15")
    S("s_lshl_b32 s58, s22, 11")
    S("s_add_u32 s57, s57, s58")
    S("s_add_u32 s57, s57, s72")
    stm([("v[16:19]",1,57,0,'x4'),("v[20:23]",1,57,1024,'x4')])
    stamp(S,6,48)
    bump(); set_flag()
    stamp(S,7,48)
    if cfg.stop_after==1:
        S("s_branch L_fin"); return S

    def gemm2(name, nsteps, s_act, act_tile_bytes, khalf_bytes, s_res, mask_fn, items_fn, bars, s_out, s_sout, final):
        S.comment(f"======== {name} ========")
        AO,AT=64,80
        S("v_lshrrev_b32 v12, 5, v0"); S("v_lshlrev_b32 v12, 10, v12")
        S("v_bfe_u32 v13, v0, 2, 2"); S("v_lshl_add_u32 v12, v13, 7, v12")
        S("v_bfe_u32 v13, v0, 3, 1"); S("v_lshl_add_u32 v12, v13, 6, v12")
        S("v_bfe_u32 v13, v0, 4, 1"); S("v_lshl_add_u32 v12, v13, 5, v12")
        S("v_and_b32 v13, 3, v0"); S("v_lshl_add_u32 v12, v13, 3, v12")
        S("s_lshl_b32 s57, s51, 6")
        S("v_xor_b32 v12, s57, v12")
        S("v_xor_b32 v13, 64, v12")
        S("v_and_b32 v7, 31, v0")
        S("v_lshlrev_b32 v7, 4, v7")
        S("v_lshrrev_b32 v8, 5, v0")
        S("v_lshl_add_u32 v7, v8, 3, v7")
        S("s_lshl_b32 s57, s55, 15")
        S("s_lshl_b32 s58, s53, 12")
        S("s_add_u32 s57, s57, s58")
        S("s_lshl_b32 s58, s51, 11")
        S("s_add_u32 s80, s57, s58")
        S(f"s_add_u32 s57, s80, s{s_res}")
        rt=None
        if name=="P2":
            Lx=S.newlabel('Lresx'); Ly=S.newlabel('Lresd')
            S("s_cmp_eq_u32 s48, 0")
            S(f"s_cbranch_scc1 {Lx}")
        for q in range(4):
            rt=S(f"buffer_load_dwordx2 v[{16+2*q}:{17+2*q}], v7, s[28:31], s57 offen offset:{q*512} sc1")
        if name=="P2":
            S(f"s_branch {Ly}")
            S.label(Lx)
            S("v_and_b32 v9, 31, v0")
            S("s_lshl_b32 s57, s98, 5")
            S("v_add_u32 v9, s57, v9")
            S("v_lshlrev_b32 v9, 10, v9")
            S("v_lshl_add_u32 v9, v8, 3, v9")
            S("s_lshl_b32 s57, s53, 7")
            S("s_lshl_b32 s58, s51, 6")
            S("s_add_u32 s57, s57, s58")
            for q in range(4):
                S(f"buffer_load_dwordx2 v[{16+2*q}:{17+2*q}], v9, s[40:43], s57 offen offset:{q*16}")
            S.label(Ly)
            S.force_wait(vm=True)
        S.wait(rt)
        for q in range(4):
            for d in range(2):
                S(f"v_lshlrev_b32 v{AO+4*q+2*d}, 16, v{16+2*q+d}")
                S(f"v_and_b32 v{AO+4*q+2*d+1}, 0xffff0000, v{16+2*q+d}")
        mask_fn()
        expect()
        sb=8 if name=="P2" else 20
        poll(S,3,7,28,68,64,69,66)
        stamp(S,sb,48)
        S(f"s_mul_i32 s78, s55, {act_tile_bytes}")
        S(f"s_add_u32 s78, s78, s{s_act}")
        S(f"s_mul_i32 s57, s51, {khalf_bytes}")
        S("s_add_u32 s78, s78, s57")
        bt={}
        def ld(s):
            def f(S):
                if s%4==0 and s>0: S("s_add_u32 s78, s78, 4096")
                r=128+4*(s%32)
                bt[s]=S(f"buffer_load_dwordx4 v[{r}:{r+3}], v1, s[28:31], s78 offen offset:{(s%4)*1024} sc1{cfg.ntact}")
            return f
        PF2=cfg.PF2
        nxt2=[min(PF2,nsteps)]
        for s in range(min(PF2,nsteps)): ld(s)(S)
        S.barrier(bars[0])
        stamp(S,sb+1,48)
        steps=[]
        for s in range(nsteps):
            for t,(acc,vr) in enumerate(((AO,5),(AT,6))):
                c = accs(acc) if (t==0 or s>0) else '0'
                d=dict(acc=acc,c=c,b=128+4*(s%32),btok=(lambda s=s: bt[s]))
                off,pre,bar=items_fn(s,t)
                d['a']=('tr',vr,off); d['a2']=512
                if pre: d['pre_reads']=pre
                lim = s+cfg.PF2MAX
                if nxt2[0]<nsteps and nxt2[0]<=lim:
                    d['post']=ld(nxt2[0]); d['postcost']=1.5 if nxt2[0]%4==0 else 1; nxt2[0]+=1
                if t==1:
                    if bar: d['after']=(lambda S,bar=bar: pbar(S,bar))
                steps.append(d)
        if name=="P2": steps[cfg.bd2]['after']=(lambda S: S.barrier("Bd2"))
        mfma_stream(S,steps,[])
        stamp(S,sb+2,48)
        S("s_lshl_b32 s57, s20, 12")
        S(f"s_add_u32 s57, s57, {SCR}")
        S("v_add_u32 v8, s57, v1")
        S("s_xor_b32 s58, s57, 0x2000")
        S("v_add_u32 v9, s58, v1")
        for q in range(4): S(f"ds_write_b128 v8, v[{AT+4*q}:{AT+4*q+3}] offset:{q*1024}")
        S.wait(lg_all=True)
        S.barrier(bars[-1])
        stamp(S,sb+3,48)
        tk=[S(f"ds_read_b128 v[{96+4*q}:{99+4*q}], v9 offset:{q*1024}") for q in range(4)]
        for q in range(4):
            S.wait(tk[q])
            S(f"v_pk_add_f32 v[{AO+4*q}:{AO+4*q+1}], v[{AO+4*q}:{AO+4*q+1}], v[{96+4*q}:{97+4*q}]")
            S(f"v_pk_add_f32 v[{AO+4*q+2}:{AO+4*q+3}], v[{AO+4*q+2}:{AO+4*q+3}], v[{96+4*q+2}:{97+4*q+2}]")
        for i in range(8): S(f"v_cvt_pk_bf16_f32 v{16+i}, v{AO+2*i}, v{AO+2*i+1}")
        S(f"v_pk_mul_f32 v[96:97], v[{AO}:{AO+1}], v[{AO}:{AO+1}]")
        S(f"v_pk_add_f32 v[98:99], v[{AO}:{AO+1}], v[{AO+2}:{AO+3}]")
        S(f"v_pk_fma_f32 v[96:97], v[{AO+2}:{AO+3}], v[{AO+2}:{AO+3}], v[96:97]")
        for i in range(2,8):
            S(f"v_pk_add_f32 v[98:99], v[98:99], v[{AO+2*i}:{AO+2*i+1}]")
            S(f"v_pk_fma_f32 v[96:97], v[{AO+2*i}:{AO+2*i+1}], v[{AO+2*i}:{AO+2*i+1}], v[96:97]")
        for b in (16,20):
            S(f"v_permlane32_swap_b32 v{b}, v{b+2}")
            S(f"v_permlane32_swap_b32 v{b+1}, v{b+3}")
        S("v_add_f32 v98, v98, v99")
        S("v_add_f32 v96, v96, v97")
        S("v_permlane32_swap_b32 v98, v96")
        S("v_add_f32 v98, v98, v96")
        S("v_and_b32 v10, 31, v0")
        S("v_lshlrev_b32 v10, 4, v10")
        S("v_lshrrev_b32 v11, 5, v0")
        S("v_lshl_add_u32 v10, v11, 2, v10")
        S("s_lshl_b32 s58, s53, 9")
        S("s_lshl_b32 s59, s51, 3")
        S("s_add_u32 s81, s58, s59")
        return
    def out_tl(s_out,s_sout):
        S(f"s_add_u32 s57, s80, s{s_out}")
        S("s_lshl_b32 s58, s55, 12")
        S("s_add_u32 s58, s58, s81")
        S(f"s_add_u32 s58, s58, s{s_sout}")
        stm([("v[16:19]",1,57,0,'x4'),("v[20:23]",1,57,1024,'x4'),("v98",10,58,0,'')])

    def mask2():
        S("s_lshl_b32 s57, s52, 1")
        S("s_add_u32 s57, s57, s50")
        S("s_mov_b32 s58, 0x11111111")
        S("s_lshl_b32 s58, s58, s57")
        S("s_cmp_eq_u32 s51, 0")
        S("s_cselect_b32 s64, s58, 0")
        S("s_cselect_b32 s65, 0, s58")
    S("s_lshl_b32 s82, s51, 15")
    S("s_lshl_b32 s83, s51, 14")
    def items2(s,t):
        pre=None
        if s%8==0: pre = setaddr2(5+t,6+s//8,extra_s=82)
        return (s%8)*2048,pre,None
    gemm2("P2",16,72,TILE,16384,70,mask2,items2,["Bd","Be"],73,74,False)
    out_tl(73,74)
    stamp(S,12,48)
    bump(); set_flag()
    stamp(S,13,48)
    if cfg.stop_after==2:
        S("s_branch L_fin"); return S

    S("s_mov_b32 s58, 0x55555555")
    S("s_lshl_b32 s58, s58, s50")
    S("s_cmp_eq_u32 s51, 0")
    S("s_cselect_b32 s64, s58, 0")
    S("s_cselect_b32 s65, 0, s58")
    S("v_lshrrev_b32 v12, 5, v0"); S("v_mul_u32_u24 v12, 1536, v12")
    S("v_bfe_u32 v13, v0, 2, 2"); S("v_mul_u32_u24 v13, 192, v13"); S("v_add_u32 v12, v12, v13")
    S("v_bfe_u32 v13, v0, 4, 1"); S("v_lshl_add_u32 v12, v13, 5, v12")
    S("v_and_b32 v13, 3, v0"); S("v_lshl_add_u32 v12, v13, 3, v12")
    S("v_and_b32 v7, 31, v0")
    S("v_lshlrev_b32 v7, 4, v7")
    S("v_lshlrev_b32 v15, 3, v0")
    S(f"v_add_u32 v15, {CST}, v15")
    S("s_lshl_b32 s57, s22, 3")
    S("s_mul_hi_u32 s57, s57, 0x55555556")
    S("s_lshl_b32 s57, s57, 11")
    S(f"s_mul_i32 s84, s54, {HTILE}")
    S("s_add_u32 s84, s84, s57")
    S("s_add_u32 s84, s84, s75")
    expect()
    poll(S,3,14,28,68,64,69,66)
    stamp(S,14,48)
    S("s_lshl_b32 s78, s54, 15")
    S("s_add_u32 s78, s78, s73")
    S("s_lshl_b32 s79, s54, 12")
    S("s_add_u32 s79, s79, s74")
    NB3=24
    b3={}; st3={}
    def ld3(s):
        def f(S):
            if s%4==0 and s>0: S("s_add_u32 s78, s78, 4096")
            r=160+4*(s%NB3)
            b3[s]=S(f"buffer_load_dwordx4 v[{r}:{r+3}], v1, s[28:31], s78 offen offset:{(s%4)*1024} sc1{cfg.ntact}")
        return f
    def ldst3(u):
        def f(S): st3[u]=S(f"buffer_load_dwordx4 v[{224+4*u}:{227+4*u}], v7, s[28:31], s79 offen offset:{u*512} sc1")
        return f
    for s in range(3): ld3(s)(S)
    S.barrier("Bf")
    stamp(S,15,48)
    gA,gB,gI=8,9,10
    ACC=[64+16*t for t in range(6)]
    def setaddr3(vreg,i):
        def f(S):
            slot(57,i)
            S(f"v_add_u32 v{vreg}, s57, v12")
        return f
    lq3=[('s',u) for u in range(8)]+[('f',i) for i in range(3,32)]
    steps=[]; fill=[]
    jb=["J1","J2","J3","J4","J5","J6","J7"]
    for s in range(32):
        g=s//5; sl=s%5
        for t in range(6):
            m=t%2; p=t//2
            d=dict(acc=ACC[t],c=('0' if s==0 else accs(ACC[t])),a=('tr',5+m,sl*3072+p*64),a2=768,b=160+4*(s%NB3),btok=(lambda s=s: b3[s]))
            if sl==0 and t<2: d['pre_reads']=setaddr3(5+m,10+2*g+m)
            if lq3:
                k,i=lq3[0]
                ok = (k=='s') or (i<=s+cfg.P3AHEAD and (i-NB3)<s and not (i>=16 and s<5))
                if ok and (k=='s' or t%2==0):
                    lq3.pop(0)
                    d['post']=(ldst3(i) if k=='s' else ld3(i)); d['postcost']=1.5 if (k=='f' and i%4==0) else 1
                    if k=='f' and i==16: d['ld16']=True
            if t==5 and (sl==4 or s==31):
                d['after']=(lambda S,bar=jb[g]: pbar(S,bar))
            steps.append(d)
    assert not lq3
    fill.append((10,0,lambda S: S.wait(st3[7])))
    for c,t in stats_to_frag(S, list(range(224,256)), (11,13,14,16), 28, gelu=(gA,gB,gI)): fill.append((10,c,t))
    first16=[i for i,st in enumerate(steps) if st.get('post') is not None]
    i16=[i for i,st in enumerate(steps) if st.get('ld16')]
    cst={}
    def rdcs(key,reg,tile):
        cst[key]=S(f"ds_read_b64 v[{reg}:{reg+1}], v15 offset:{tile*512}")
    for i in i16: steps[i]['need_fill']=len(fill)
    mfma_stream(S,steps,fill)
    stamp(S,16,48)
    def gelu_quads(Sx, ag, au, quads, T, A_, B_, I_):
        def bc(r):
            return (f"v[{r&~1}:{(r&~1)+1}]", r&1)
        (At,As),(Bt,Bs),(It,Is)=bc(A_),bc(B_),bc(I_)
        for i0 in range(0,len(quads),2):
            qs=quads[i0:i0+2]
            def pk(fn):
                for j,q in enumerate(qs):
                    for i in (0,2): Sx(fn(T[j][i],4*q+i))
            def one(fn):
                for j,q in enumerate(qs):
                    for i in range(4): Sx(fn(T[j][i],4*q+i))
            P=lambda r: f"v[{r}:{r+1}]"
            pk(lambda t,k: f"v_pk_mul_f32 {P(t)}, {P(ag+k)}, {P(ag+k)}")
            pk(lambda t,k: f"v_pk_fma_f32 {P(t)}, {P(t)}, {Bt}, {At} op_sel:[0,{Bs},{As}] op_sel_hi:[1,{Bs},{As}]")
            pk(lambda t,k: f"v_pk_mul_f32 {P(t)}, {P(t)}, {P(ag+k)}")
            one(lambda t,k: f"v_exp_f32 v{t}, v{t}")
            pk(lambda t,k: f"v_pk_mul_f32 {P(au+k)}, {P(au+k)}, {P(ag+k)}")
            pk(lambda t,k: f"v_pk_fma_f32 {P(t)}, {P(t)}, {It}, {It} op_sel:[0,{Is},{Is}] op_sel_hi:[1,{Is},{Is}]")
            one(lambda t,k: f"v_rcp_f32 v{t}, v{t}")
            pk(lambda t,k: f"v_pk_mul_f32 {P(au+k)}, {P(au+k)}, {P(t)}")
    globals()['gelu_quads_fn']=gelu_quads
    T=[[16,17,18,19],[20,21,22,23]]
    order=(2,1,0) if cfg.episplit else (0,1,2)
    for p in order:
        rdcs(('g',p),32,3+2*p); rdcs(('u',p),36,4+2*p)
        S.wait(cst[('g',p)]); S(f"v_mfma_f32_32x32x16_bf16 {accs(ACC[2*p])}, v[32:35], v[28:31], {accs(ACC[2*p])}")
        S.wait(cst[('u',p)]); S(f"v_mfma_f32_32x32x16_bf16 {accs(ACC[2*p+1])}, v[36:39], v[28:31], {accs(ACC[2*p+1])}")
    if cfg.episplit:
        slot(57,22,extra_s=83)
        S("s_lshl_b32 s58, s50, 13"); S("s_add_u32 s57, s57, s58")
        S("v_add_u32 v24, s57, v1")
        S("s_lshl_b32 s57, s20, 12"); S(f"s_add_u32 s57, s57, {SCR}"); S("v_add_u32 v25, s57, v1")
        S("s_lshl_b32 s57, s20, 10"); S(f"s_add_u32 s57, s57, {SCR+16384}"); S("v_add_u32 v26, s57, v1")
        S("v_mov_b32 v11, 0")
        S("ds_write_b128 v26, v[8:11]")
        for q in range(4): S(f"ds_write_b128 v24, v[{ACC[4]+4*q}:{ACC[4]+4*q+3}] offset:{q*1024}")
        for q in range(4): S(f"ds_write_b128 v24, v[{ACC[5]+4*q}:{ACC[5]+4*q+3}] offset:{4096+q*1024}")
        for q in (2,3): S(f"ds_write_b128 v25, v[{ACC[2]+4*q}:{ACC[2]+4*q+3}] offset:{(q-2)*1024}")
        for q in (2,3): S(f"ds_write_b128 v25, v[{ACC[3]+4*q}:{ACC[3]+4*q+3}] offset:{2048+(q-2)*1024}")
        S.wait(lg_all=True)
        S.barrier("J8")
        work=[(1,[0,1]),(0,[0,1,2,3])]
    else:
        work=[(0,[0,1,2,3]),(1,[0,1,2,3]),(2,[0,1,2,3])]
    for p,quads in work:
        ag,au=ACC[2*p],ACC[2*p+1]
        gelu_quads(S,ag,au,quads,T,gA,gB,gI)
        for q in quads:
            for i in range(2): S(f"v_cvt_pk_bf16_f32 v{ag+2*q+i}, v{au+4*q+2*i}, v{au+4*q+2*i+1}")
        for b in [ag+4*(q//2) for q in quads if q%2==0]:
            S(f"v_permlane32_swap_b32 v{b}, v{b+2}")
            S(f"v_permlane32_swap_b32 v{b+1}, v{b+3}")
        S(f"s_add_u32 s57, s84, {p*2048}")
        stm([(f"v[{ag+2*q}:{ag+2*q+3}]",1,57,(q//2)*1024,'x4') for q in quads if q%2==0])
    if cfg.episplit:
        S.force_wait(vm=True)
        S.barrier("J9")
    stamp(S,18,48)
    bump(); set_flag()
    stamp(S,17,48)
    if cfg.stop_after==3:
        S("s_branch L_fin"); return S

    def mask4():
        S("s_lshl_b32 s57, s52, 1")
        S("s_add_u32 s57, s57, s50")
        S("s_mov_b32 s58, 0x11111111")
        S("s_lshl_b32 s58, s58, s57")
        S("s_lshl_b32 s59, 1, s57")
        S("s_cmp_eq_u32 s51, 0")
        S("s_cselect_b32 s64, s58, 0")
        S("s_cselect_b32 s65, s59, s58")
    S("s_mul_i32 s87, s51, 6144")
    kb=["K1","K2","K3","K4","K5"]
    def items4(s,t):
        g=s//8; sl=s%8
        pre=None
        if sl==0:
            if g<5: pre=setaddr2(5+t,24+2*g,extra_s=83)
            else: pre=setaddr2(5+t,34,add_s=87)
        bar = kb[g] if (sl==7 and g<5) else None
        return sl*2048,pre,bar
    gemm2("P4",43,75,HTILE,43*1024,73,mask4,items4,["Bh","K6"],None,None,True)
    Lfin=S.newlabel('Lfinal'); Ldone=S.newlabel('Lp4done')
    S("s_cmp_eq_u32 s48, 1")
    S(f"s_cbranch_scc1 {Lfin}")
    S(f"s_mov_b32 s76, {XB[2]}")
    S(f"s_mov_b32 s77, {STATS+2*SBUF}")
    out_tl(76,77)
    Lnh=S.newlabel('Lnohalo'); Lhd=S.newlabel('Lhalod')
    stamp(S,24,48)
    S("s_and_b32 s57, s52, s50")
    S("s_cmp_eq_u32 s57, 0")
    S(f"s_cbranch_scc1 {Lnh}")
    S("s_cmp_eq_u32 s21, 15")
    S(f"s_cbranch_scc1 {Lnh}")
    S("s_lshl_b32 s59, s53, 12")
    S("s_lshl_b32 s57, s51, 11")
    S("s_add_u32 s59, s59, s57")
    S(f"s_add_u32 s59, s59, {TEAMSZ+HALOX+32768}")
    S("buffer_store_dwordx4 v[16:19], v1, s[28:31], s59 offen sc1")
    S("buffer_store_dwordx4 v[20:23], v1, s[28:31], s59 offen offset:1024 sc1")
    S(f"s_add_u32 s59, s81, {TEAMSZ+HSTATS+4096}")
    S("buffer_store_dword v98, v10, s[28:31], s59 offen sc1")
    S.items.append(Ins("s_waitcnt vmcnt(3)"))
    S("s_add_u32 s57, s23, s49")
    S("s_add_u32 s57, s57, 1")
    S("v_mov_b32 v7, s57")
    S("s_mov_b64 exec, 1")
    S("buffer_store_dword v7, v4, s[32:35], 0 offen")
    S("buffer_store_dword v7, v4, s[36:39], 0 offen sc1")
    S.items.append(Ins("s_waitcnt vmcnt(2)"))
    S("s_lshl_b32 s57, s53, 3")
    S("s_lshl_b32 s58, s51, 2")
    S("s_add_u32 s57, s57, s58")
    S(f"s_add_u32 s57, s57, {TEAMSZ+HFLAGS+64}")
    S("v_mov_b32 v7, s57")
    S("s_add_u32 s57, s24, 1")
    S("v_mov_b32 v8, s57")
    S("buffer_store_dword v8, v7, s[28:31], 0 offen sc1")
    S("s_mov_b64 exec, -1")
    bump()
    S(f"s_branch {Lhd}")
    S.label(Lnh)
    bump(); set_flag()
    S.label(Lhd)
    stamp(S,25,48)
    if cfg.stop_after==4:
        S("s_branch L_fin"); return S
    S("s_mov_b32 s48, 1")
    S("s_branch L_layer")
    S.label(Lfin)
    S("s_nop 1")
    S("v_and_b32 v7, 31, v0")
    S("s_lshl_b32 s57, s98, 5")
    S("v_add_u32 v7, s57, v7")
    S("v_lshlrev_b32 v7, 10, v7")
    S("v_lshrrev_b32 v8, 5, v0")
    S("v_lshl_add_u32 v7, v8, 4, v7")
    S("s_lshl_b32 s57, s53, 7")
    S("s_lshl_b32 s58, s51, 6")
    S("s_add_u32 s57, s57, s58")
    S("buffer_store_dwordx4 v[16:19], v7, s[44:47], s57 offen")
    S("buffer_store_dwordx4 v[20:23], v7, s[44:47], s57 offen offset:32")
    S.force_wait(vm=True)
    stamp(S,26,48)
    S("s_or_b32 s57, s22, s20")
    S("s_cmp_lg_u32 s57, 0")
    S("s_cbranch_scc1 L_fin")
    S(f"v_mov_b32 v7, {EPOCH}")
    S("s_add_u32 s58, s23, 256")
    S("v_mov_b32 v8, s58")
    S("s_mov_b64 exec, 1")
    S("buffer_store_dword v8, v7, s[28:31], 0 offen")
    S("s_branch L_fin")
    return S

def gen_H():
    S=Stream('H')
    S.label("L_helper")
    S("s_nop 4")
    srd(S,32,6,7,512*1536*2)
    srd(S,36,8,9,512*512*2)
    srd(S,40,12,13,512*1376*2)
    srd(S,44,14,15,512*1376*2)
    srd(S,48,10,11,1376*512*2)
    S("s_sub_u32 s52, s20, 4")
    S("s_lshr_b32 s53, s22, 3")
    S("s_and_b32 s54, s22, 7")
    S("v_lshrrev_b32 v2, 2, v0")
    S("v_and_b32 v3, 3, v0")
    S("v_lshlrev_b32 v3, 4, v3")
    S("v_mul_u32_u24 v4, 3072, v2"); S("v_add_u32 v4, v4, v3")
    S("v_lshrrev_b32 v5, 3, v0"); S("v_lshlrev_b32 v5, 10, v5")
    S("v_bfe_u32 v8, v0, 4, 1"); S("v_lshlrev_b32 v8, 2, v8"); S("v_and_b32 v9, 7, v0"); S("v_xor_b32 v8, v8, v9")
    S("v_lshl_add_u32 v5, v8, 4, v5")
    S("s_lshl_b32 s55, s22, 6")
    S("s_lshl_b32 s56, s54, 7")
    S("s_lshl_b32 s57, s22, 3")
    S("s_mul_hi_u32 s57, s57, 0x55555556")
    S("s_lshl_b32 s57, s57, 6")
    S("s_mul_i32 s58, s52, 64*3072")
    S("s_mul_i32 s59, s52, 32*1024")
    S("s_mul_i32 s60, s52, 64*2752")
    S("s_lshl_b32 s61, s52, 12")
    S("v_add_u32 v3, s61, v1")
    if cfg.prof: S("s_mov_b32 s98, s92")
    hidx=[0]
    HN=[]
    def hs(name):
        if not (cfg.prof and cfg.prof_h): return
        hstamp(S,hidx[0]); HN.append(name); hidx[0]+=1
    S.hnames=HN
    itok={}
    win=[None]
    RREG={0:64,1:80,2:96,3:112,4:128,5:144,14:160,15:176,16:192,17:208}
    RREG.update({32:224,33:240})
    srd(S,84,16,17,2048*1024) if False else None
    def touch(soff_expr_lines, nkb, imm0=0, srdreg=28, vlane=1):
        if not cfg.pretouch: return
        for l in soff_expr_lines: S(l)
        for c in range(nkb):
            S(f"buffer_load_dword v8, v{vlane}, s[{srdreg}:{srdreg+3}], s62 offen offset:{(c%4)*1024}")
            if c%4==3 and c+1<nkb: S("s_add_u32 s62, s62, 4096")
    def warm_xcd(sr, nbytes, lo=0.0, hi=1.0):
        a=int(nbytes*lo)//1024; b=-(-int(nbytes*hi)//1024)
        per=-(-(b-a)//128)
        S("s_lshr_b32 s62, s2, 3"); S("s_lshl_b32 s62, s62, 2"); S("s_add_u32 s62, s62, s52")
        S(f"s_mul_i32 s62, s62, {per*1024}")
        S(f"s_add_u32 s62, s62, {a*1024}")
        for c in range(per):
            S(f"buffer_load_dword v8, v1, s[{sr}:{sr+3}], s62 offen offset:{(c%4)*1024}")
            if c%4==3 and c+1<per: S("s_add_u32 s62, s62, 4096")
    def warm_chip(sr, nbytes):
        kb=-(-nbytes//1024); per=-(-kb//1024)
        S("s_lshl_b32 s62, s2, 2"); S("s_add_u32 s62, s62, s52")
        S(f"s_mul_i32 s62, s62, {per*1024}")
        for c in range(per):
            S(f"buffer_load_dword v8, v1, s[{sr}:{sr+3}], s62 offen offset:{(c%4)*1024}")
    def touch_o_x1():
        touch(["s_lshl_b32 s62, s52, 15","s_lshl_b32 s63, s22, 11","s_add_u32 s62, s62, s63",f"s_add_u32 s62, s62, {OB[0]}"],2)
    def touch_xs(xb,sb):
        touch(["s_and_b32 s62, s52, 1","s_lshl_b32 s63, s53, 1","s_add_u32 s62, s62, s63","s_lshl_b32 s99, s62, 12","s_lshl_b32 s62, s62, 15",
               "s_lshl_b32 s63, s54, 12","s_add_u32 s62, s62, s63","s_lshr_b32 s63, s52, 1","s_lshl_b32 s63, s63, 11","s_add_u32 s62, s62, s63",
               f"s_add_u32 s62, s62, {xb}"],2)
        if cfg.pretouch:
            S("s_lshl_b32 s63, s54, 9"); S("s_add_u32 s62, s99, s63"); S(f"s_add_u32 s62, s62, {sb}")
            S("s_mov_b64 exec, 0xffffffff")
            S("buffer_load_dword v8, v1, s[28:31], s62 offen")
            S("s_mov_b64 exec, -1")
    def touch_out():
        if not cfg.pretouch: return
        S("s_add_u32 s84, s16, 0"); S("s_addc_u32 s85, s17, 0"); S(f"s_mov_b32 s86, {2048*1024}"); S("s_mov_b32 s87, 0x00020000")
        S("s_lshl_b32 s62, s21, 2"); S("s_lshl_b32 s63, s53, 1"); S("s_add_u32 s62, s62, s63"); S("s_and_b32 s63, s52, 1"); S("s_add_u32 s62, s62, s63")
        S("s_lshl_b32 s62, s62, 15")
        S("s_lshl_b32 s63, s54, 7"); S("s_add_u32 s62, s62, s63"); S("s_lshr_b32 s63, s52, 1"); S("s_lshl_b32 s63, s63, 6"); S("s_add_u32 s62, s62, s63")
        S("v_and_b32 v9, 31, v0"); S("v_lshlrev_b32 v9, 10, v9")
        S("buffer_load_dword v8, v9, s[84:87], s62 offen")
    def touch_h():
        touch([f"s_mul_i32 s62, s52, {HTILE}","s_lshl_b32 s63, s57, 5","s_add_u32 s62, s62, s63",f"s_add_u32 s62, s62, {HB[0]}"],6)
    def throttle():
        if win[0] is not None and S.vm_issued-S.vm_done>win[0]:
            S.wait(('vm',S.vm_issued-win[0]))
    def spec_of(i):
        if i<6:
            nm=['k','v','k','v','q','q'][i]; half=[0,0,1,1,0,1][i]
            col={'q':0,'k':1024,'v':2048}[nm]
            return (32,4,3072,55,col,256*half,58)
        elif i<10:
            return (36,5,512,56,0,256*(i-6),59)
        return None
    W3V=[6,10,18]
    def w3chunks(i):
        g=(i-10)//2; m=(i-10)%2
        rows=80 if g<6 else 32
        return g,m,rows,rows*12//64
    def w3_c(k,nch):
        S(f"s_add_u32 s62, s52, {4*k}")
        if 4*k+3>=nch:
            S("s_sub_u32 s63, s62, 3"); S(f"s_cmp_ge_u32 s62, {nch}"); S("s_cselect_b32 s62, s63, s62")
    def w3_issue(i, emit):
        g,m,rows,nch=w3chunks(i)
        sr=40 if m==0 else 44
        for k in range(4):
            if 4*k>=nch: break
            w3_c(k,nch)
            S("s_mul_i32 s63, s62, 0x5556"); S("s_lshr_b32 s63, s63, 16")
            S(f"s_mul_i32 s63, s63, {16*2752}")
            S("s_add_u32 s63, s63, s57")
            S(f"s_add_u32 s63, s63, {80*g*2752}")
            emit(k, sr, W3V[k%3])
    def rload(i):
        r=RREG[i]
        if 10<=i<24:
            tk=[None]
            def em(k,sr,vl):
                tk[0]=S(f"buffer_load_dwordx4 v[{r+4*k}:{r+4*k+3}], v{vl}, s[{sr}:{sr+3}], s63 offen{cfg.nt}")
            w3_issue(i,em)
            itok[('r',i)]=tk[0]
            return
        if i<10:
            sr,vl,pitch,scol,colimm,row0,swave=spec_of(i)
            S(f"s_add_u32 s62, s{scol}, s{swave}")
            S(f"s_add_u32 s62, s62, {colimm+row0*pitch}")
        else:
            g=(i-24)//2; kh=(i-24)%2; row0=688*kh+128*g
            sr,vl,pitch=48,5,512
            S("s_add_u32 s62, s56, s59")
            S(f"s_add_u32 s62, s62, {row0*1024}")
        tok=None
        for c in range(4):
            if c>0: S(f"s_add_u32 s62, s62, {16*pitch}")
            tok=S(f"buffer_load_dwordx4 v[{r+4*c}:{r+4*c+3}], v{vl}, s[{sr}:{sr+3}], s62 offen{cfg.nt}"); throttle()
        itok[('r',i)]=tok
    def rput(n):
        L,i=divmod(n,NITEMS)
        base=(n*SLOT)&0x1ffff
        r=RREG[i]
        S.wait(itok[('r',i)])
        tok=None
        if 10<=i<24:
            g,m,rows,nch=w3chunks(i)
            for k in range(4):
                if 4*k>=nch: break
                w3_c(k,nch)
                S("s_lshl_b32 s62, s62, 10"); S(f"s_add_u32 s62, s62, {base}")
                S("v_add_u32 v2, s62, v1")
                if S.lg_issued-S.lg_done>=14: S.wait(('lg',S.lg_issued-8))
                tok=S(f"ds_write_b128 v2, v[{r+4*k}:{r+4*k+3}]")
            itok[n]=tok
            return
        S(f"v_add_u32 v2, {base}, v3")
        for c in range(4):
            if S.lg_issued-S.lg_done>=14: S.wait(('lg',S.lg_issued-8))
            tok=S(f"ds_write_b128 v2, v[{r+4*c}:{r+4*c+3}] offset:{c*1024}")
        itok[n]=tok
    def dma(n):
        L,i=divmod(n,NITEMS)
        if i in RREG:
            if L==0 and ('r',i) not in itok: rload(i)
            rput(n); return
        base=(n*SLOT)&0x1ffff
        tok=None
        if 10<=i<24:
            tk=[None]
            def em(k,sr,vl):
                S("s_lshl_b32 s62, s62, 10"); S(f"s_add_u32 m0, s62, {base}")
                S("s_nop 0")
                tk[0]=S(f"buffer_load_dwordx4 v{vl}, s[{sr}:{sr+3}], s63 offen lds"); throttle()
            w3_issue(i,em)
            itok[n]=tk[0]
            return
        spec=spec_of(i)
        if spec:
            sr,vl,pitch,scol,colimm,row0,swave=spec
            S(f"s_add_u32 s62, s{scol}, s{swave}")
            S(f"s_add_u32 s62, s62, {colimm+row0*pitch}")
            S(f"s_add_u32 m0, s61, {base}")
            for c in range(4):
                if c>0:
                    S(f"s_add_u32 s62, s62, {16*pitch}")
                    S(f"s_add_u32 m0, m0, 1024")
                tok=S(f"buffer_load_dwordx4 v{vl}, s[{sr}:{sr+3}], s62 offen{cfg.ntw3 if 10<=i<22 else ''} lds"); throttle()
        elif i<34:
            g=(i-24)//2; kh=(i-24)%2
            row0=688*kh+128*g
            S("s_add_u32 s62, s56, s59")
            S(f"s_add_u32 s62, s62, {row0*1024}")
            S(f"s_add_u32 m0, s61, {base}")
            for c in range(4):
                if c>0:
                    S(f"s_add_u32 s62, s62, {8*1024}")
                    S(f"s_add_u32 m0, m0, 1024")
                tok=S(f"buffer_load_dwordx4 v5, s[48:51], s62 offen lds"); throttle()
        else:
            S("s_lshr_b32 s63, s52, 1"); S(f"s_mul_i32 s63, s63, {688*1024}")
            S("s_and_b32 s62, s52, 1"); S(f"s_mul_i32 s62, s62, {24*1024}")
            S("s_add_u32 s62, s62, s63")
            S("s_add_u32 s62, s62, s56")
            S(f"s_add_u32 s62, s62, {640*1024}")
            S("s_mul_i32 s63, s52, 3072")
            S(f"s_add_u32 m0, s63, {base}")
            for c in range(3):
                if c>0:
                    S(f"s_add_u32 s62, s62, {8*1024}")
                    S(f"s_add_u32 m0, m0, 1024")
                tok=S(f"buffer_load_dwordx4 v5, s[48:51], s62 offen lds"); throttle()
        itok[n]=tok
    nlayers = 2 if cfg.stop_after>4 else 1
    last_item = NITEMS*nlayers-1
    done=set()
    def issue(*ns):
        for n in ns:
            if n<=last_item and n not in done:
                dma(n); done.add(n)
    S("v_lshrrev_b32 v7, 4, v0"); S("v_lshlrev_b32 v7, 9, v7")
    S("v_bfe_u32 v8, v0, 2, 2"); S("v_lshl_add_u32 v7, v8, 6, v7")
    S("v_and_b32 v8, 3, v0"); S("v_lshl_add_u32 v7, v8, 3, v7")
    S("s_and_b32 s64, s52, 1")
    S("s_lshl_b32 s65, s64, 5")
    S("v_add_u32 v7, s65, v7")
    for r in range(12,16): S(f"v_mov_b32 v{r}, 0x3f803f80")
    S("v_mov_b32 v8, 0"); S("v_mov_b32 v9, 0"); S(f"v_mov_b32 v10, {ZERO8}")
    if S.lg_issued-S.lg_done>=14: S.wait(lg_all=True)
    S("ds_write_b64 v10, v[8:9]")
    S("v_lshrrev_b32 v11, 4, v0"); S("v_lshlrev_b32 v11, 9, v11")
    S("v_and_b32 v8, 15, v0"); S("v_lshl_add_u32 v11, v8, 4, v11"); S("v_add_u32 v11, 256, v11")
    S("v_and_b32 v16, 15, v0"); S("v_lshlrev_b32 v16, 4, v16"); S("v_add_u32 v16, 256, v16")
    S("s_lshr_b32 s66, s52, 1")
    S("s_lshl_b32 s67, s66, 9")
    S("s_lshl_b32 s68, s64, 7")
    S("s_add_u32 s67, s67, s68")
    S(f"s_add_u32 s67, s67, {CST}")
    S("v_and_b32 v17, 15, v0"); S("v_lshlrev_b32 v17, 3, v17")
    S("v_bfe_u32 v8, v0, 4, 1"); S("v_lshl_add_u32 v17, v8, 8, v17")
    S("v_add_u32 v17, s67, v17")
    S(f"v_mov_b32 v8, {ZERO8}")
    S("v_cmp_gt_u32 vcc, 32, v0")
    S("v_cndmask_b32 v17, v8, v17, vcc")
    for r in (22,23,26,27): S(f"v_mov_b32 v{r}, 0")
    S("v_and_b32 v18, 15, v0"); S("v_lshlrev_b32 v18, 4, v18")
    S("v_bfe_u32 v8, v0, 4, 1")
    S("v_lshrrev_b32 v9, 5, v0")
    S("v_mul_u32_u24 v19, 2304, v8"); S("v_add_u32 v19, v19, v18"); S("v_lshl_add_u32 v19, v9, 3, v19")
    S("s_mul_i32 s68, s64, 4608"); S(f"s_add_u32 s68, s68, {KBUF}")
    S("v_add_u32 v19, s68, v19")
    S("v_mul_u32_u24 v28, 4608, v8"); S("v_add_u32 v28, v28, v18")
    S("v_mul_u32_u24 v9, 2304, v9"); S("v_add_u32 v28, v28, v9")
    S("s_mul_i32 s68, s64, 9216"); S(f"s_add_u32 s68, s68, {VBUF}")
    S("v_add_u32 v28, s68, v28")
    S.force_wait(lg=True)
    for j,vr in ((0,6),(1,10),(2,18)):
        S(f"s_add_u32 s62, s52, {j}")
        S("s_sub_u32 s63, s62, 3"); S("s_cmp_ge_u32 s62, 3"); S("s_cselect_b32 s62, s63, s62")
        S("s_lshl_b32 s62, s62, 6")
        S("v_add_u32 v8, s62, v0")
        S("v_mul_u32_u24 v9, 0x5556, v8"); S("v_lshrrev_b32 v9, 18, v9")
        S("v_mul_u32_u24 v30, 12, v9"); S("v_sub_u32 v8, v8, v30")
        S(f"v_mul_u32_u24 v{vr}, 2752, v9"); S(f"v_lshl_add_u32 v{vr}, v8, 4, v{vr}")

    if cfg.earlywarm:
        warm_chip(32,512*1536*2)
        if cfg.earlytouch: touch_h(); touch_o_x1()
    if cfg.tlbwarm:
        S("v_mov_b32 v2, 0")
        S("s_mov_b64 exec, 1")
        for sr in (40,44,48):
            S(f"buffer_load_dword v36, v2, s[{sr}:{sr+3}], 0 offen")
        S("s_mov_b64 exec, -1")
    S.barrier("S0")
    win[0]=cfg.win0
    def chip_others():
        for sr,nb in ((36,512*512*2),(40,512*1376*2),(44,512*1376*2),(48,1376*512*2)): warm_chip(sr,nb)
    def narrow():
        for i in (0,1): rload(i)
        issue(0,1)
        for i in (2,3): rload(i)
        issue(2,3)
        for i in (4,5): rload(i)
        issue(4,5)
    so=cfg.startord
    if so=='A':
        warm_xcd(32,512*1536*2,0.0,0.5); warm_xcd(32,512*1536*2,0.5,1.0); narrow(); chip_others()
    elif so=='B':
        narrow(); touch_o_x1(); chip_others()
    elif so=='C':
        if not cfg.earlywarm: warm_chip(32,512*1536*2)
        narrow(); touch_o_x1(); chip_others()
    elif so=='F':
        win[0]=None
        for i in range(6): rload(i)
        issue(0,1)
    elif so=='D':
        for i in range(6): rload(i)
        chip_others()
        issue(0,1,2,3,4,5)
    elif so=='E':
        warm_xcd(32,512*1536*2,0.0,0.5)
        for i in (0,1): rload(i)
        warm_xcd(32,512*1536*2,0.5,1.0)
        for i in (2,3,4,5): rload(i)
        chip_others()
        issue(0,1,2,3,4,5)
    if cfg.stop_after==0:
        S.force_wait(vm=True); S("s_branch L_fin"); return S
    def cs_finish(dreg):
        S(f"v_cvt_pk_bf16_f32 v30, v{dreg}, v{dreg}")
        S(f"v_lshlrev_b32 v30, 16, v30")
        S(f"v_sub_f32 v31, v{dreg}, v30")
        S(f"v_cvt_pk_bf16_f32 v32, v{dreg}, v31")
        S(f"v_and_b32 v30, 0xffff0000, v32")
        S(f"v_sub_f32 v31, v31, v30")
        S(f"v_cvt_pk_bf16_f32 v33, v31, 0")
        S("v_and_b32 v30, 15, v0"); S("v_lshlrev_b32 v30, 3, v30")
        S("v_add_u32 v30, s70, v30")
        S("s_mov_b64 exec, 0xffff")
        S("ds_write_b64 v30, v[32:33]")
        S("s_mov_b64 exec, -1")
    def tr16(dst, vaddr, off):
        S(f"ds_read_b64_tr_b16 v[{dst}:{dst+1}], v{vaddr} offset:{off}")
        return S(f"ds_read_b64_tr_b16 v[{dst+2}:{dst+3}], v{vaddr} offset:{off+256}")
    def cs_item(nA,nB,tileA,halfA,tileB,halfB):
        bA=(nA*SLOT)&0x1ffff; bB=(nB*SLOT)&0x1ffff
        S.wait(lg_all=True)
        S("s_cmp_lt_u32 s52, 2")
        csel(S,69,bA,bB)
        csel(S,70,CST+tileA*512+halfA*256,CST+tileB*512+halfB*256)
        S("s_lshl_b32 s71, s64, 7")
        S("s_add_u32 s70, s70, s71")
        S("v_add_u32 v29, s69, v7")
        tk=[]
        for sp in range(4): tk.append(tr16(36+4*sp,29,sp*2048))
        for sp in range(8):
            S.wait(tk[sp])
            r=36+4*(sp%4)
            S(f"v_mfma_f32_16x16x32_bf16 v[52:55], v[12:15], v[{r}:{r+3}], {'0' if sp==0 else 'v[52:55]'}")
            if sp+4<8: tk.append(tr16(r,29,(sp+4)*2048))
        cs_finish(52)

    for L in range(nlayers):
        n0=NITEMS*L
        def pub(*items):
            toks=[itok[n0+i] for i in items if (n0+i) in itok]
            S.wait(*toks)
        def bar(name, publish=(), items=None, lg=True, w=None, pre=None):
            pub(*publish)
            if lg: S.wait(lg_all=True)
            hs(f"L{L} {name} arrive")
            S.barrier(name)
            hs(f"L{L} {name} pass")
            if pre: pre()
            if items is not None:
                win[0]=(None if w=='none' else (w if w is not None else cfg.win))
                issue(*[n0+i for i in items])
                hs(f"L{L} {name} issued")
        AF = 160 if L==0 else 64
        BT = 224 if L==0 else 128
        ST = AF
        if L==0:
            S(f"s_mov_b32 s76, {HALOX}")
            S(f"s_mov_b32 s77, {HSTATS}")
        else:
            S("s_cmp_eq_u32 s21, 0")
            csel(S,76,HALOX,HALOX+32768)
            csel(S,77,HSTATS,HSTATS+4096)
        bar("Ba",publish=(0,1),lg=True)
        if L==0 and cfg.startord=='F':
            pass
        lo0=((n0+0)*SLOT)&0x1ffff; lo1=((n0+1)*SLOT)&0x1ffff; hi0=((n0+2)*SLOT)&0x1ffff; hi1=((n0+3)*SLOT)&0x1ffff
        S("s_cmp_lt_u32 s52, 2")
        csel(S,69,lo0,lo1)
        csel(S,71,hi0,hi1)
        S("v_add_u32 v29, s69, v7")
        S("v_add_u32 v35, s71, v7")
        def spoll(maxit, Lok, sleep):
            Lp=S.newlabel('Lhp')
            S("s_mov_b32 s79, 0")
            S.label(Lp)
            S.smem("s_load_dwordx16 s[80:95], s[72:73], 0 glc")
            S("s_add_u32 s79, s79, 1")
            S.force_wait(lg=True)
            scheck(Lok)
            if sleep: S(f"s_sleep {sleep}")
            S(f"s_cmp_lt_u32 s79, {maxit}")
            S(f"s_cbranch_scc1 {Lp}")
        def scheck(Lok):
            for i in range(16): S(f"s_xor_b32 s{80+i}, s{80+i}, s75")
            for st_ in (8,4,2,1):
                for i in range(st_): S(f"s_or_b32 s{80+i}, s{80+i}, s{80+i+st_}")
            S("s_cmp_eq_u32 s80, 0")
            S(f"s_cbranch_scc1 {Lok}")
        def swarm():
            if not cfg.halowarm: return
            S("s_lshl_b32 s79, s22, 2"); S("s_add_u32 s79, s79, s52")
            S("s_lshl_b32 s79, s79, 9"); S("s_add_u32 s79, s79, s76"); S("s_add_u32 s79, s79, 256")
            S("s_add_u32 s82, s18, s79"); S("s_addc_u32 s83, s19, 0")
            for c in range(4): S.smem(f"s_load_dword s84, s[82:83], {c*64} ")
            S("s_lshl_b32 s79, s22, 1"); S("s_and_b32 s74, s52, 1"); S("s_add_u32 s79, s79, s74")
            S("s_lshr_b32 s74, s79, 2"); S("s_lshl_b32 s74, s74, 9"); S("s_and_b32 s79, s79, 3"); S("s_lshl_b32 s79, s79, 6")
            S("s_add_u32 s79, s79, s74"); S("s_add_u32 s79, s79, s77"); S("s_add_u32 s79, s79, 256")
            S("s_add_u32 s86, s18, s79"); S("s_addc_u32 s87, s19, 0")
            S.smem("s_load_dword s85, s[86:87], 0")
        S("s_add_u32 s75, s23, 1")
        S(f"s_mov_b32 s74, {PF0 if L==0 else HFLAGS+64}")
        S("s_add_u32 s72, s18, s74")
        S("s_addc_u32 s73, s19, 0")
        for sp in range(7): tr16(AF+4*sp,29,sp*2048)
        S.wait(lg_all=True)
        tr16(AF+4*7,29,7*2048)
        S.wait(lg_all=True)
        if L==0:
            for q in range(8):
                S(f"v_mfma_f32_16x16x32_bf16 v[52:55], v[12:15], v[{AF+4*q}:{AF+4*q+3}], {'0' if q==0 else 'v[52:55]'}")
        hs(f"L{L} lo preread")
        if L==0 and cfg.startord=='F': issue(2,3,4,5)
        bar("Ba2",publish=(2,3,4,5),lg=True)
        for sp in range(8,15): tr16(AF+4*sp,35,(sp%8)*2048)
        S.wait(lg_all=True)
        tr16(AF+4*15,35,7*2048)
        S.wait(lg_all=True)
        if L==0:
            for q in range(8,16):
                S(f"v_mfma_f32_16x16x32_bf16 v[60:63], v[12:15], v[{AF+4*q}:{AF+4*q+3}], {'0' if q==8 else 'v[60:63]'}")
            S("s_lshl_b32 s70, s66, 9"); S("s_lshl_b32 s71, s64, 7"); S("s_add_u32 s70, s70, s71"); S(f"s_add_u32 s70, s70, {CST}")
            cs_finish(52)
            S("s_add_u32 s70, s70, 256")
            cs_finish(60)
            cs_item(n0+4,n0+5,2,0,2,1)
            S.wait(lg_all=True)
        hs(f"L{L} A preread")
        if L==0 and cfg.startord=='F':
            touch_o_x1()
            if not cfg.cwarm2: chip_others()
        if cfg.chalo:
            if cfg.halowarm: swarm()
            bar("Bb",lg=False)
            S.force_wait(lg=True)
        else:
            S.smem("s_load_dwordx16 s[80:95], s[72:73], 0 glc")
            bar("Bb",lg=False)
            LokB=S.newlabel('LhokB')
            S.force_wait(lg=True)
            if L==1:
                S("s_cmp_eq_u32 s21, 0")
                S(f"s_cbranch_scc1 {LokB}")
            scheck(LokB)
            spoll(cfg.timeout,LokB,cfg.hsleep)
            S.label(LokB)
            S("s_nop 1")
        hs(f"L{L} halo flag")
        ht={}
        def hload(sp):
            if sp%2==0 and sp>0: S("s_add_u32 s76, s76, 4096")
            r=BT+4*(sp%8)
            ht[sp]=S(f"buffer_load_dwordx4 v[{r}:{r+3}], v11, s[28:31], s76 offen offset:{(sp%2)*2048} sc1")
        def ldstats():
            t=None
            for u in range(8):
                t=S(f"buffer_load_dwordx4 v[{ST+4*u}:{ST+3+4*u}], v16, s[28:31], s77 offen offset:{u*512} sc1")
            return t
        def dostats(t):
            S.wait(t)
            for c,tt_ in stats_to_frag(S, list(range(ST,ST+32)), (30,31,32,33), 20, out_rstd=34): S(tt_)
        for sp in range(8): hload(sp)
        for sp in range(16):
            S.wait(ht[sp])
            hb_=BT+4*(sp%8)
            S(f"v_mfma_f32_16x16x32_bf16 v[56:59], v[{AF+4*sp}:{AF+4*sp+3}], v[{hb_}:{hb_+3}], {'0' if sp==0 else 'v[56:59]'}")
            if sp+8<16: hload(sp+8)
            if sp==7:
                stt=ldstats()
        hs(f"L{L} halo mfma done")
        dostats(stt)
        ct=S("ds_read_b64 v[24:25], v17")
        S.wait(ct)
        S("v_mfma_f32_16x16x32_bf16 v[56:59], v[24:27], v[20:23], v[56:59]")
        for i in range(4): S(f"v_mul_f32 v{56+i}, v{56+i}, v34")
        Lv=S.newlabel('Lhv'); Ld=S.newlabel('Lhd')
        HALO_FIN=True
        S("s_cmp_ge_u32 s52, 2")
        S(f"s_cbranch_scc1 {Lv}")
        S("v_cvt_pk_bf16_f32 v30, v56, v57")
        S("v_cvt_pk_bf16_f32 v31, v58, v59")
        S("ds_write_b64 v19, v[30:31]")
        S(f"s_branch {Ld}")
        S.label(Lv)
        S("ds_write_b128 v28, v[56:59]")
        S.label(Ld)
        S.force_wait(lg=True)
        hs(f"L{L} halo written")
        def ld_r(*items):
            def f():
                win[0]=None
                if L==0:
                    for i in items: rload(i)
            return f
        bar("Bc",items=(6,7,8,9,10,11),w='none',pre=(touch_o_x1 if (L==1 and cfg.touchL1o) else None))
        if cfg.stop_after==1+4*L:
            S.force_wait(vm=True); S("s_branch L_fin"); return S
        bar("Bd",publish=(6,7,8,9))
        bar("Bd2",items=(12,13),w='none')
        ld_r(14,15,16,17)()
        bar("Be",items=((14,15,16,17) if L==1 else ()))
        if cfg.stop_after==2+4*L:
            S.force_wait(vm=True); S("s_branch L_fin"); return S
        def cs3(g):
            if L!=0: return
            rows=80 if g<6 else 32
            bA=((n0+10+2*g)*SLOT)&0x1ffff; bB=((n0+11+2*g)*SLOT)&0x1ffff
            S.wait(lg_all=True)
            S("s_cmp_lt_u32 s52, 2")
            csel(S,69,bA,bB)
            S("v_lshrrev_b32 v35, 2, v0"); S("v_mul_u32_u24 v29, 192, v35")
            S("v_and_b32 v35, 3, v0"); S("v_lshl_add_u32 v29, v35, 3, v29")
            S("s_add_u32 s69, s69, s65")
            S("v_add_u32 v29, s69, v29")
            ops=[(sl,p) for sl in range(rows//16) for p in range(3)]
            tk=[]
            def rd(j):
                sl,p=ops[j]; r=36+2*(j%8)
                return S(f"ds_read_b64_tr_b16 v[{r}:{r+1}], v29 offset:{sl*3072+p*64}")
            for j in range(min(8,len(ops))): tk.append(rd(j))
            for j,(sl,p) in enumerate(ops):
                S.wait(tk[j]); r=36+2*(j%8); a=52+4*p
                first=(g==0 and sl==0)
                S(f"v_mfma_f32_16x16x16_bf16 v[{a}:{a+3}], v[12:13], v[{r}:{r+1}], {'0' if first else 'v[%d:%d]'%(a,a+3)}")
                if j+8<len(ops): tk.append(rd(j+8))
        def cs3_fin():
            if L!=0: return
            for p in range(3):
                S("s_lshr_b32 s70, s52, 1"); S(f"s_add_u32 s70, s70, {3+2*p}"); S("s_lshl_b32 s70, s70, 9")
                S("s_lshl_b32 s71, s64, 7"); S("s_add_u32 s70, s70, s71"); S(f"s_add_u32 s70, s70, {CST}")
                cs_finish(52+4*p)
                S("v_mov_b32 v32, 0"); S("v_mov_b32 v33, 0")
                S("v_add_u32 v30, 256, v30")
                S("s_mov_b64 exec, 0xffff"); S("ds_write_b64 v30, v[32:33]"); S("s_mov_b64 exec, -1")
                S.wait(lg_all=True)
        bar("Bf",publish=(10,11,12,13))
        cs3(0); cs3(1)
        if L==0: issue(n0+14,n0+15)
        bar("J1",publish=(14,15),items=(18,19),w='none')
        cs3(2)
        if L==0: issue(n0+16,n0+17)
        bar("J2",publish=(16,17),items=(20,21),w='none')
        cs3(3)
        bar("J3",publish=(18,19),items=(22,23),w='none')
        cs3(4)
        bar("J4",publish=(20,21),items=(24,25),w='none')
        ld_r(32,33)()
        cs3(5)
        bar("J5",publish=(22,23),items=(26,27),w='none',pre=(touch_h if L==0 else None))
        if cfg.warmP3 and L==0: warm_xcd(36,512*512*2)
        cs3(6); cs3_fin()
        bar("J6",items=(28,29),w='none',pre=(touch_h if (L==1 and cfg.touchL1) else None))
        if cfg.episplit:
            bar("J7")
            S(f"v_mov_b32 v30, {MISC+32}")
            tm=S("ds_read_b32 v31, v30"); S.wait(tm)
            S("v_readfirstlane_b32 s82, v31")
            S("s_mov_b32 s84, s18"); S("s_mov_b32 s85, s19"); S("s_mov_b32 s86, s82"); S("s_mov_b32 s87, 0x00020000")
            S("s_mov_b32 s88, s18"); S("s_mov_b32 s89, s19"); S(f"s_sub_u32 s90, {WS_USED}, s82"); S("s_mov_b32 s91, 0x00020000")
            S(f"s_mul_i32 s92, s52, {HTILE}"); S("s_lshl_b32 s93, s57, 5"); S("s_add_u32 s92, s92, s93"); S(f"s_add_u32 s92, s92, {HB[0]}")
            b22=((n0+22)*SLOT)&0x1ffff; b23=((n0+23)*SLOT)&0x1ffff
            S("s_cmp_lt_u32 s52, 2"); csel(S,93,b22,b23)
            S("s_and_b32 s94, s52, 1"); S("s_lshl_b32 s94, s94, 13"); S("s_add_u32 s93, s93, s94")
            S("v_add_u32 v29, s93, v1")
            S("s_lshl_b32 s93, s52, 12"); S(f"s_add_u32 s93, s93, {SCR}"); S("v_add_u32 v35, s93, v1")
            S("s_lshl_b32 s93, s52, 10"); S(f"s_add_u32 s93, s93, {SCR+16384}"); S("v_add_u32 v30, s93, v1")
            bar("J8",lg=False)
            CN=36; ag=40; au=48; T2=[[56,57,58,59],[60,61,62,63]]
            t0=S(f"ds_read_b128 v[{CN}:{CN+3}], v30")
            A_,B_,I_=CN,CN+1,CN+2
            def st2h(data,soff,imm):
                S(f"buffer_store_dwordx4 {data}, v1, s[84:87], s{soff} offen offset:{imm}")
                return S(f"buffer_store_dwordx4 {data}, v1, s[88:91], s{soff} offen offset:{imm} sc1")
            last=None
            for (va,go,uo,p,oi) in ((29,0,4096,2,0),(29,2048,4096+2048,2,1024),(35,0,2048,1,1024)):
                for q in range(2): S(f"ds_read_b128 v[{ag+4*q}:{ag+4*q+3}], v{va} offset:{go+q*1024}")
                for q in range(2): S(f"ds_read_b128 v[{au+4*q}:{au+4*q+3}], v{va} offset:{uo+q*1024}")
                S.wait(lg_all=True)
                gelu_quads_fn(S,ag,au,[0,1],T2,A_,B_,I_)
                for i in range(4): S(f"v_cvt_pk_bf16_f32 v{ag+i}, v{au+2*i}, v{au+2*i+1}")
                S(f"v_permlane32_swap_b32 v{ag}, v{ag+2}"); S(f"v_permlane32_swap_b32 v{ag+1}, v{ag+3}")
                S(f"s_add_u32 s93, s92, {p*2048}")
                last=st2h(f"v[{ag}:{ag+3}]",93,oi)
            S.wait(last)
            bar("J9",items=(30,31),w='none',lg=False)
        else:
            bar("J7",items=(30,31),w='none')
        if cfg.stop_after==3+4*L:
            S.force_wait(vm=True); S("s_branch L_fin"); return S
        bar("Bh",publish=(24,25,26,27))
        bar("K1",publish=(28,29),items=(32,33))
        bar("K2",publish=(30,31),items=(34,35))
        bar("K3",publish=(32,33),items=(36,37),pre=None if L==0 else touch_out)
        bar("K4",publish=(34,),items=(38,39))
        bar("K5",items=(40,41))
        bar("K6",items=(42,))
        if cfg.stop_after==4+4*L:
            S.force_wait(vm=True); S("s_branch L_fin"); return S
    S("s_branch L_fin")
    return S

def build():
    P=gen_prologue(); C=gen_C(); H=gen_H()
    global HNAMES
    HNAMES=getattr(H,'hnames',[])
    nl = 2 if cfg.stop_after>4 else 1
    cb=C.barriers; hb=H.barriers
    while cb and cb[0] in ("S0","S00"):
        assert cb[0]==hb[0]
        cb=cb[1:]; hb=hb[1:]
    if cfg.stop_after>=4:
        exp=cb*nl
        if cfg.stop_after in (5,6,7):
            pass
        else:
            assert hb==exp, (hb,exp)
    else:
        assert hb==cb, (hb,cb)
    hdr=open(os.path.join(os.path.dirname(os.path.abspath(__file__)),'header.txt')).read().rstrip('\n')
    txt=hdr+f"\n; @launch grid=(256,1,1) block=(512,1,1) lds={LDS_BYTES}\n"
    txt+='.amdgcn_target "amdgcn-amd-amdhsa--gfx950"\n.text\n'
    txt+=f".globl {KNAME}\n.p2align 8\n.type {KNAME},@function\n{KNAME}:\n"
    txt+=P.render()+"\n"+C.render()+"\n"+H.render()+"\n"
    txt+="L_fin:\n    s_waitcnt vmcnt(0) lgkmcnt(0)\nL_end:\n    s_endpgm\nL_codeend:\n"
    txt+=".set CODE_LAST, (L_codeend - L_pc - 16) & 0xfffffff0\n" if cfg.codepf else ""
    txt+=f""".section .rodata,"a"
.p2align 6
.amdhsa_kernel {KNAME}
  .amdhsa_next_free_vgpr 256
  .amdhsa_next_free_sgpr 100
  .amdhsa_accum_offset 256
  .amdhsa_group_segment_fixed_size 0
  .amdhsa_kernarg_size 80
  .amdhsa_user_sgpr_count 2
  .amdhsa_user_sgpr_kernarg_segment_ptr 1
  .amdhsa_system_sgpr_workgroup_id_x 1
.end_amdhsa_kernel
"""
    return txt

if __name__=="__main__":
    import argparse
    ap=argparse.ArgumentParser()
    ap.add_argument('--stop',type=int,default=99)
    ap.add_argument('--prof',action='store_true')
    ap.add_argument('-o',default='interleave_layers__sliding_local_dilated__geglu_ffn__prompt.s')
    a=ap.parse_args()
    cfg.stop_after=a.stop
    cfg.prof=a.prof
    open(a.o,'w').write(build())
    print("wrote",a.o)
```
